```python
import torch

def _softmax(x, axis=-1):
    return torch.softmax(x, dim=axis)

def _gelu(x):
    return torch.nn.functional.gelu(x, approximate='tanh')

def _silu(x):
    return torch.nn.functional.silu(x)

def _sigmoid(x):
    return torch.sigmoid(x)

def _layernorm(x, axis=-1, eps=1e-05):
    m = x.mean(dim=axis, keepdim=True)
    v = x.var(dim=axis, keepdim=True, unbiased=False)
    return (x - m) / torch.sqrt(v + eps)

def _scatter_add(tgt, idx, src, axis=0):
    return tgt.clone().index_add_(axis, idx, src)

def _segment_sum(src, seg, n):
    out = torch.zeros((n,) + src.shape[1:], dtype=src.dtype)
    return out.index_add_(0, seg, src)

def _pad(x, pw):
    flat = tuple((v for pair in reversed(pw) for v in pair))
    return torch.nn.functional.pad(x, flat)
kernel_name = 'interleave_layers__memory_aug_recurrent_mem_tr__glu_gated_reglu__prompt'

def setup_inputs():

    _w = lambda a: (lambda t: t.to(torch.bfloat16) if t.is_floating_point() else t)(torch.as_tensor(a))

    def _A_setup():
        B, S, Dm = (1, 2048, 512)
        H, Dh = (32, 128)
        M, seg = (8, 32)
        seg = min(seg, S)
        S = S // seg * seg
        return {'x': _w((lambda *s: torch.randn(*s, dtype=torch.bfloat16) * 0.05)(B, S, Dm)), 'mem0': _w((lambda *s: torch.randn(*s, dtype=torch.bfloat16) * 0.2)(B, M, Dm)), 'Wq': _w((lambda *s: torch.randn(*s, dtype=torch.bfloat16) * 1.6)(Dm, H, Dh) * Dm ** (-0.5)), 'Wk': _w((lambda *s: torch.randn(*s, dtype=torch.bfloat16) * 1.6)(Dm, H, Dh) * Dm ** (-0.5)), 'Wv': _w((lambda *s: torch.randn(*s, dtype=torch.bfloat16) * 0.2)(Dm, H, Dh) * Dm ** (-0.5)), 'Wo': _w((lambda *s: torch.randn(*s, dtype=torch.bfloat16) * 0.2)(H, Dh, Dm) * (H * Dh) ** (-0.5)), 'seg_len': seg}
    _A_in = _A_setup()

    def _B_setup():
        B, S, D, F = (1, 2048, 512, 1792)
        return {'x': _w((lambda *s: torch.randn(*s, dtype=torch.bfloat16) * 0.05)(B, S, D)), 'W_gate': _w((lambda *s: torch.randn(*s, dtype=torch.bfloat16) * 0.2)(D, F) * (2.0 / D) ** 0.5), 'W_up': _w((lambda *s: torch.randn(*s, dtype=torch.bfloat16) * 0.2)(D, F) * (2.0 / D) ** 0.5), 'W_down': _w((lambda *s: torch.randn(*s, dtype=torch.bfloat16) * 0.2)(F, D) * (1.0 / F) ** 0.5)}
    _B_in = _B_setup()
    return {'A_x': _A_in['x'], 'A_mem0': _A_in['mem0'], 'A_Wq': _A_in['Wq'], 'A_Wk': _A_in['Wk'], 'A_Wv': _A_in['Wv'], 'A_Wo': _A_in['Wo'], 'A_seg_len': _A_in['seg_len'], 'B_x': _B_in['x'], 'B_W_gate': _B_in['W_gate'], 'B_W_up': _B_in['W_up'], 'B_W_down': _B_in['W_down']}

def reference(A_x, A_mem0, A_Wq, A_Wk, A_Wv, A_Wo, A_seg_len, B_x, B_W_gate, B_W_up, B_W_down):

    def _A_ref(x, mem0, Wq, Wk, Wv, Wo, seg_len):
        B, S, Dm = x.shape
        H, Dh = (Wq.shape[1], Wq.shape[2])
        M = mem0.shape[1]
        scale = Dh ** (-0.5)
        n_seg = S // seg_len
        L = M + seg_len
        idx = torch.arange(L)
        mask = (idx[:, None] < M) | (idx[:, None] >= idx[None, :])
        mem = mem0
        outs = []
        for s in range(n_seg):
            xs = x[:, s * seg_len:(s + 1) * seg_len, :].clone()
            h = torch.concatenate([mem, xs], axis=1)
            q = torch.einsum('btd,dhe->bhte', h, Wq)
            k = torch.einsum('btd,dhe->bhte', h, Wk)
            v = torch.einsum('btd,dhe->bhte', h, Wv)
            scores = torch.einsum('bhqe,bhke->bhqk', q, k) * scale
            scores = torch.where(mask[None, None], scores, -1000000000.0)
            p = _softmax(scores, axis=-1)
            o = torch.einsum('bhqk,bhke->bhqe', p, v)
            o = torch.einsum('bhte,hed->btd', o, Wo)
            mem = o[:, :M, :].clone()
            outs.append(o[:, M:, :])
        return torch.concatenate(outs, axis=1)

    def _B_ref(x, W_gate, W_up, W_down):
        gate = torch.einsum('bsd,df->bsf', x, W_gate)
        up = torch.einsum('bsd,df->bsf', x, W_up)
        gate = gate * (lambda x, dt: x.to(dt))(gate > 0, gate.dtype)
        h = gate * up
        return torch.einsum('bsf,fd->bsd', h, W_down)
    x = A_x
    x = x + _A_ref(_layernorm(x, axis=-1), A_mem0, A_Wq, A_Wk, A_Wv, A_Wo, A_seg_len)
    x = x + _B_ref(_layernorm(x, axis=-1), B_W_gate, B_W_up, B_W_down)
    x = x + _A_ref(_layernorm(x, axis=-1), A_mem0, A_Wq, A_Wk, A_Wv, A_Wo, A_seg_len)
    x = x + _B_ref(_layernorm(x, axis=-1), B_W_gate, B_W_up, B_W_down)
    return x
```

```python
import re

REG_RE = re.compile(r'^(-|abs\()?([vas])(\d+|\[(\d+):(\d+)\])\)?$')


def parse_reg(tok):
    tok = tok.strip()
    if tok in ('vcc', 'vcc_lo', 'vcc_hi'):
        return {('x', 'vcc')}
    if tok in ('exec', 'exec_lo', 'exec_hi'):
        return {('x', 'exec')}
    if tok == 'm0':
        return {('x', 'm0')}
    m = REG_RE.match(tok)
    if not m:
        return set()
    k = m.group(2)
    if m.group(4) is not None:
        return {(k, i) for i in range(int(m.group(4)), int(m.group(5)) + 1)}
    return {(k, int(m.group(3)))}


def split_ops(s):
    out, depth, cur = [], 0, ''
    for ch in s:
        if ch in '[(':
            depth += 1
        if ch in '])':
            depth -= 1
        if ch == ',' and depth == 0:
            out.append(cur.strip())
            cur = ''
        else:
            cur += ch
    if cur.strip():
        out.append(cur.strip())
    return out


TRANS = ('v_exp_f32', 'v_log_f32', 'v_rcp_f32', 'v_rsq_f32', 'v_sqrt_f32', 'v_sin_f32', 'v_cos_f32', 'v_rcp_iflag_f32')


class Inst:
    __slots__ = ('text', 'mn', 'dst', 'src', 'kind', 'passes', 'srcc', 'ab', 'label', 'target', 'nop', 'dpp', 'wide_store',
                 'sdata', 'lds_dma', 'lanesel')

    def __init__(self, text):
        self.text = text
        self.label = None
        self.target = None
        self.dst = set()
        self.src = set()
        self.kind = 'other'
        self.passes = 0
        self.srcc = set()
        self.ab = set()
        self.nop = 1
        self.dpp = False
        self.wide_store = False
        self.sdata = set()
        self.lds_dma = False
        self.lanesel = set()
        t = text.split(';')[0].strip()
        if not t or t.startswith('.'):
            self.kind = 'dir'
            self.nop = 0
            self.mn = ''
            return
        if t.endswith(':'):
            self.kind = 'label'
            self.label = t[:-1]
            self.nop = 0
            self.mn = ''
            return
        parts = t.split(None, 1)
        mn = parts[0]
        self.mn = mn
        rest = parts[1] if len(parts) > 1 else ''
        ops = split_ops(rest)
        mods = ''
        if ops:
            lp = ops[-1].split(None, 1)
            if len(lp) > 1 and not ops[-1].startswith('hwreg'):
                ops[-1] = lp[0]
                mods = lp[1]
        R = [parse_reg(o) for o in ops]

        def U(lst):
            s = set()
            for x in lst:
                s |= x
            return s

        if mn == 's_nop':
            self.kind = 'nop'
            self.nop = int(ops[0], 0) + 1
        elif mn.startswith('s_branch') or mn.startswith('s_cbranch'):
            self.kind = 'branch'
            self.target = ops[0]
        elif mn.startswith('v_mfma') or mn.startswith('v_smfmac'):
            self.kind = 'mfma'
            self.passes = 8 if '32x32' in mn else 4
            self.dst = R[0]
            self.ab = R[1] | R[2]
            if mn.startswith('v_smfmac'):
                self.srcc = R[0]
                self.ab |= R[3]
            else:
                self.srcc = R[3]
            self.src = self.ab | self.srcc
        elif mn.startswith('v_'):
            self.kind = 'valu'
            if 'dpp' in mn or 'row_' in mods or 'quad_perm' in mods or 'wave_' in mods:
                self.dpp = True
            if mn.startswith('v_cmp'):
                self.dst = R[0]
                self.src = U(R[1:])
                if mn.startswith('v_cmpx'):
                    self.dst |= {('x', 'exec')}
            elif mn.startswith('v_permlane') and 'swap' in mn:
                self.dst = R[0] | R[1]
                self.src = R[0] | R[1]
            elif '_co_' in mn:
                self.dst = R[0] | R[1]
                self.src = U(R[2:])
            elif mn.startswith('v_readlane') or mn.startswith('v_writelane'):
                self.dst = R[0]
                self.src = U(R[1:])
                self.lanesel = R[2]
                if mn.startswith('v_writelane'):
                    self.src |= R[0]
            else:
                self.dst = R[0]
                self.src = U(R[1:])
                if mn.startswith(('v_fmac', 'v_dot2c', 'v_pk_fmac', 'v_mac')) or self.dpp:
                    self.src |= R[0]
                if mn.startswith('v_cndmask') and len(ops) == 3:
                    self.src |= {('x', 'vcc')}
        elif mn.startswith('ds_'):
            self.kind = 'ds'
            if mn.startswith(('ds_read', 'ds_bpermute', 'ds_permute', 'ds_swizzle')) or '_rtn' in mn:
                self.dst = R[0]
                self.src = U(R[1:])
            else:
                self.src = U(R)
        elif mn.startswith(('buffer_', 'global_')):
            self.kind = 'vmem'
            allmods = mods.split()
            if 'lds' in allmods or '_lds_' in mn:
                self.lds_dma = True
                self.src = U(R) | {('x', 'm0')}
            elif 'load' in mn:
                self.dst = R[0]
                self.src = U(R[1:])
                if 'd16' in mn:
                    self.src |= R[0]
            elif 'store' in mn:
                self.src = U(R)
                d = R[0] if mn.startswith('buffer_') else R[1]
                if 'x3' in mn or 'x4' in mn:
                    self.wide_store = True
                    self.sdata = d
            elif 'atomic' in mn:
                self.src = U(R)
                if 'sc0' in allmods:
                    self.dst = R[0]
            else:
                pass
        elif mn.startswith('s_'):
            self.kind = 'salu'
            if mn.startswith(('s_cmp', 's_waitcnt', 's_barrier', 's_sleep', 's_endpgm', 's_setprio', 's_bitcmp')):
                self.src = U(R)
            else:
                self.dst = R[0] if R else set()
                self.src = U(R[1:])
                if 'saveexec' in mn:
                    self.dst |= {('x', 'exec')}
        else:
            raise ValueError('unknown instruction ' + text)


def is_vgpr(s):
    return {r for r in s if r[0] in 'va'}


def is_sgpr(s):
    return {r for r in s if r[0] == 's' or r == ('x', 'vcc')}


def need(p, c):
    n = 0
    if p.kind == 'valu':
        vd = is_vgpr(p.dst)
        sd = is_sgpr(p.dst)
        if c.kind == 'mfma' and vd & c.src:
            n = max(n, 2)
        if c.kind == 'valu':
            if p.mn in TRANS and vd & c.src and c.mn not in TRANS:
                n = max(n, 1)
            if p.mn in TRANS and vd & c.src:
                n = max(n, 1)
            if c.dpp and vd & c.src:
                n = max(n, 2)
            if c.mn.startswith('v_permlane') and vd & c.src:
                n = max(n, 2)
            if c.mn.startswith(('v_readlane', 'v_readfirstlane')) and vd & c.src:
                n = max(n, 1)
            if sd & c.src:
                n = max(n, 2)
            if sd & c.lanesel:
                n = max(n, 4)
            if ('op_sel' in p.text or 'sdwa' in p.mn) and vd & (c.src | c.dst):
                n = max(n, 1)
        if c.kind == 'vmem' and sd & c.src:
            n = max(n, 5)
        if ('x', 'exec') in p.dst:
            if c.kind == 'mfma':
                n = max(n, 4)
            if c.kind == 'valu':
                n = max(n, 5 if c.dpp else 4)
    if p.kind == 'mfma':
        four = p.passes == 4
        if c.kind == 'mfma':
            if p.dst & c.ab:
                n = max(n, 8 if four else 12)
            if p.dst & c.srcc:
                if not (p.dst == c.srcc and p.passes == c.passes):
                    n = max(n, 6 if four else 10)
            elif p.dst & c.dst:
                n = max(n, 8 if four else 12)
        elif c.kind in ('valu', 'ds', 'vmem'):
            if p.dst & (c.src | c.dst):
                n = max(n, 8 if four else 12)
            if c.kind == 'valu' and p.srcc & c.dst:
                n = max(n, 3 if four else 7)
            if c.kind in ('ds', 'vmem') and p.srcc & c.dst:
                n = max(n, 3 if four else 7)
    if p.wide_store and p.sdata & c.dst:
        n = max(n, 2 if c.kind in ('valu', 'mfma') else 1)
    if p.kind == 'salu' and ('x', 'm0') in p.dst and c.lds_dma:
        n = max(n, 1)
    return n


WINDOW = 14


class Asm:
    def __init__(self):
        self.lines = []
        self.uid = 0

    def __call__(self, text):
        for ln in text.split('\n'):
            ln = ln.strip()
            if ln:
                self.lines.append(ln)

    def newlabel(self, base='L'):
        self.uid += 1
        return '%s_%d' % (base, self.uid)

    def label(self, name):
        self.lines.append(name + ':')

    def finalize(self, verbose=False):
        ins = [Inst(l) for l in self.lines]
        inserted = 0
        out = []
        for c in ins:
            if c.kind not in ('dir', 'label'):
                dist = 0
                req = 0
                for p in reversed(out):
                    if p.kind in ('dir', 'label'):
                        continue
                    if p.kind == 'branch' and p.mn == 's_branch':
                        break
                    if p.mn == 's_endpgm':
                        break
                    k = need(p, c) - dist
                    if k > req:
                        req = k
                    dist += p.nop
                    if dist >= WINDOW:
                        break
                if req > 0:
                    out.append(Inst('s_nop %d' % (req - 1)))
                    inserted += 1
                    if verbose:
                        print('nop %d before: %s' % (req, c.text))
            out.append(c)
        changed = True
        while changed:
            changed = False
            pos = {c.label: i for i, c in enumerate(out) if c.kind == 'label'}
            for i, b in enumerate(out):
                if b.kind != 'branch' or b.target not in pos:
                    continue
                t = pos[b.target]
                prods = []
                dist = 1
                j = i - 1
                while j >= 0 and dist < WINDOW:
                    p = out[j]
                    if p.kind not in ('dir', 'label'):
                        if p.mn in ('s_branch', 's_endpgm'):
                            break
                        prods.append((p, dist))
                        dist += p.nop
                    j -= 1
                req = 0
                d2 = 0
                j = t + 1
                while j < len(out) and d2 < WINDOW:
                    c = out[j]
                    if c.kind not in ('dir', 'label'):
                        for p, d1 in prods:
                            k = need(p, c) - (d1 + d2)
                            if k > req:
                                req = k
                        d2 += c.nop
                        if c.mn in ('s_branch', 's_endpgm'):
                            break
                    j += 1
                if req > 0:
                    out.insert(t + 1, Inst('s_nop %d' % (req - 1)))
                    inserted += 1
                    if verbose:
                        print('edge nop %d after label %s' % (req, b.target))
                    changed = True
                    break
        self.n_inserted = inserted
        return '\n'.join(('' if c.kind in ('label', 'dir') else '  ') + c.text for c in out) + '\n'


def v(i, n=1):
    return 'v%d' % i if n == 1 else 'v[%d:%d]' % (i, i + n - 1)


def a(i, n=1):
    return 'a%d' % i if n == 1 else 'a[%d:%d]' % (i, i + n - 1)


def s(i, n=1):
    return 's%d' % i if n == 1 else 's[%d:%d]' % (i, i + n - 1)
```

```python
from asmlib import v, a, s
import gen as G
from gen import *

LOG2E = 1.4426950408889634
import struct
def f32(x): return '0x%08x' % struct.unpack('<I', struct.pack('<f', x))[0]
CSC = (128 ** -0.5) * LOG2E


def xlane_reduce(k, op, r, t):
    for sw in ('v_permlane16_swap_b32', 'v_permlane32_swap_b32'):
        k(f'v_mov_b32 {v(t)}, {v(r)}')
        k(f'{sw} {v(r)}, {v(t)}')
        k(f'{op} {v(r)}, {v(r)}, {v(t)}')


def role_chain(k):
    k.label('L_CHAIN')
    (S_L, S_H, S_LDS, S_OFF, S_SO, S_SO2, S_S, S_PARTR, S_PARTW, S_MEMB, S_KX, S_VX, S_FKV, S_KMO, S_VMO, S_FCH,
     S_A, S_B_, S_C) = range(70, 89)
    S_OMASK = 90
    k(f's_lshr_b32 {s(S_L)}, {s(S_ROLE)}, 5')
    k(f's_and_b32 {s(S_H)}, {s(S_ROLE)}, 31')
    srd(k, S_W0, P_WQ, 4 * MB)
    srd(k, S_W1, P_WK, 4 * MB)
    srd(k, S_W2, P_WV, 4 * MB)
    srd(k, S_W3, P_WO, 4 * MB)
    k(f's_lshl_b32 {s(S_PARTW)}, {s(S_L)}, 19')
    k(f's_add_u32 {s(S_PARTW)}, {s(S_PARTW)}, {PART}')
    k(f's_lshl_b32 {s(S_T0)}, {s(S_H)}, 13')
    k(f's_add_u32 {s(S_PARTR)}, {s(S_PARTW)}, {s(S_T0)}')
    k(f's_lshl_b32 {s(S_MEMB)}, {s(S_L)}, 15')
    k(f's_add_u32 {s(S_MEMB)}, {s(S_MEMB)}, {MEM}')
    V_SENT = 4
    for i in range(4):
        k(f'v_mov_b32 {v(V_SENT + i)}, -1')
    k(f's_lshl_b32 {s(S_T0)}, {s(S_WAVE)}, 11')
    k(f's_add_u32 {s(S_T0)}, {s(S_T0)}, {s(S_PARTR)}')
    for par in range(2):
        for i in range(2):
            k(f'buffer_store_dwordx4 {v(V_SENT, 4)}, {v(V_L16)}, {s(S_WS, 4)}, {s(S_T0)} offen offset:{i * 1024} sc1')
        if par == 0:
            k(f's_add_u32 {s(S_T0)}, {s(S_T0)}, {256 * KB}')
    V_PUB = 10
    k(f'v_bfe_u32 v3, {v(V_LANE)}, 2, 2')
    k(f'v_bfe_u32 v8, {v(V_LANE)}, 4, 1')
    k('v_lshl_add_u32 v3, v3, 1, v8')
    k(f'v_and_b32 v8, 3, {v(V_LANE)}')
    k('v_lshlrev_b32 v9, 5, v3')
    k(f'v_lshl_add_u32 {v(V_PUB)}, v8, 3, v9')
    k(f's_lshl_b32 {s(S_A)}, {s(S_H)}, 8')
    k(f's_add_u32 {s(S_A)}, {s(S_A)}, {s(S_MEMB)}')
    skip = k.newlabel('CI')
    k(f's_cmp_lg_u32 {s(S_WAVE)}, 0')
    k(f's_cbranch_scc1 {skip}')
    k(f's_mov_b64 exec, {s(S_LO32, 2)}')
    S_M0 = 92
    srd(k, S_M0, P_MEM0, 8192)
    k('v_lshlrev_b32 v9, 10, v3')
    k('v_lshl_add_u32 v9, v8, 1, v9')
    k(f's_lshl_b32 {s(S_T0)}, {s(S_H)}, 5')
    for t in range(4):
        k(f'buffer_load_ushort {v(12 + t)}, v9, {s(S_M0, 4)}, {s(S_T0)} offen offset:{8 * t}')
    k('s_waitcnt vmcnt(0)')
    k('v_lshl_or_b32 v12, v13, 16, v12')
    k('v_lshl_or_b32 v13, v15, 16, v14')
    k('v_min_u32 v13, -2, v13')
    k(f'buffer_store_dwordx2 v[12:13], {v(V_PUB)}, {s(S_WS, 4)}, {s(S_A)} offen sc1')
    for sl in range(1, 4):
        k(f's_add_u32 {s(S_T0)}, {s(S_A)}, {sl * 8192}')
        k(f'buffer_store_dwordx2 {v(V_SENT, 2)}, {v(V_PUB)}, {s(S_WS, 4)}, {s(S_T0)} offen sc1')
    k('s_mov_b64 exec, 1')
    k(f's_lshl_b32 {s(S_T0)}, 1, {s(S_XCC)}')
    k(f'v_mov_b32 v12, {s(S_T0)}')
    k(f's_lshl_b32 {s(S_T0)}, {s(S_L)}, 2')
    k(f'v_mov_b32 v13, 16')
    k(f'buffer_atomic_or v12, v13, {s(S_DBG, 4)}, {s(S_T0)} offen')
    k('s_mov_b64 exec, -1')
    k.label(skip)
    init_arrive(k)
    k(f'v_mov_b32 {v(V_SENT + 2)}, -1')
    k(f's_lshl_b32 {s(S_LDS)}, {s(S_WAVE)}, 15')
    k(f's_lshl_b32 {s(S_SO)}, {s(S_H)}, 8')
    k(f's_lshl_b32 {s(S_T0)}, {s(S_WAVE)}, 6')
    k(f's_add_u32 {s(S_SO)}, {s(S_SO)}, {s(S_T0)}')
    k(f's_lshl_b32 {s(S_SO2)}, {s(S_H)}, 17')
    k(f's_lshl_b32 {s(S_T0)}, {s(S_WAVE)}, 8')
    k(f's_add_u32 {s(S_SO2)}, {s(S_SO2)}, {s(S_T0)}')
    V_TR, V_TRO, V_WV = 11, 12, 13
    k(f'v_bfe_u32 v16, {v(V_LANE)}, 5, 1')
    k(f'v_bfe_u32 v17, {v(V_LANE)}, 4, 1')
    k(f'v_bfe_u32 v18, {v(V_LANE)}, 3, 1')
    k(f'v_bfe_u32 v19, {v(V_LANE)}, 2, 1')
    k(f'v_and_b32 v20, 3, {v(V_LANE)}')
    k('v_lshlrev_b32 v21, 4, v16')
    k('v_lshl_add_u32 v21, v19, 2, v21')
    k('v_add_u32 v21, v21, v17')
    k('v_lshl_add_u32 v21, v18, 1, v21')
    k('v_lshlrev_b32 v21, 6, v21')
    k('v_lshl_add_u32 v21, v20, 4, v21')
    k(f'v_add_u32 {v(V_TR)}, {s(S_LDS)}, v21')
    k('v_lshlrev_b32 v21, 4, v16')
    k('v_lshl_add_u32 v21, v18, 3, v21')
    k('v_lshl_add_u32 v21, v17, 2, v21')
    k('v_add_u32 v21, v21, v19')
    k('v_lshlrev_b32 v21, 6, v21')
    k('v_lshrrev_b32 v22, 1, v20')
    k('v_lshl_add_u32 v21, v22, 13, v21')
    k('v_and_b32 v22, 1, v20')
    k('v_lshl_add_u32 v21, v22, 5, v21')
    k(f'v_add_u32 {v(V_TRO)}, {s(S_LDS)}, v21')
    k(f'v_add_u32 {v(V_WV)}, {s(S_LDS)}, {v(V_L16)}')
    WQ = lambda odd, kb: odd * 64 + kb * 8
    WK = lambda odd, kb: 128 + odd * 64 + kb * 8
    WO = lambda tg, t, kb: 128 + ((tg * 4 + t) * 2 + kb) * 8

    def sp_consume(fn, q, kind='a'):
        def f(slot):
            for kl in range(2):
                for odd in range(2):
                    base = fn(odd, 2 * q + kl)
                    for kbb in range(2):
                        for hf in range(2):
                            off = slot * 8192 + (64 * kl + 32 * kbb + 8 * hf) * 64 + odd * 8
                            k(f'ds_read_b64_tr_b16 {R(kind, base + 4 * kbb + 2 * hf, 2)}, {v(V_TR)} offset:{off}')
        return f

    def wo_consume(tg):
        def f(slot):
            for t in range(4):
                for kb in range(2):
                    for kbb in range(2):
                        for hf in range(2):
                            off = slot * 8192 + (64 * kb + 32 * kbb + 2 * hf) * 64 + t * 8
                            k(f'ds_read_b64_tr_b16 {v(WO(tg, t, kb) + 4 * kbb + 2 * hf, 2)}, {v(V_TRO)} offset:{off}')
        return f

    def wv_consume(q):
        def f(slot):
            sp_consume(lambda odd, kb: 32 + ((kb & 1) * 2 + odd) * 8, q, 'v')(slot)
            k('s_waitcnt lgkmcnt(0)')
            for i in range(8):
                k(f'ds_write_b128 {v(V_WV)}, {v(32 + 4 * i, 4)} offset:{slot * 8192 + i * 1024}')
        return f

    ld = Loader(k, 14, S_LDS, S_OFF)
    pieces = []
    for q in range(4):
        pieces.append(dict(srd=S_W0, soff=S_SO, ld=8192, row0=q * 128, consume=sp_consume(WQ, q)))
    for q in range(4):
        pieces.append(dict(srd=S_W1, soff=S_SO, ld=8192, row0=q * 128, consume=sp_consume(WK, q)))
    for st in range(4):
        pieces.append(dict(srd=S_W3, soff=S_SO2, ld=1024, row0=0, coff=st * 64, group=2, consume=wo_consume(st // 2)))
    for q in range(4):
        pieces.append(dict(srd=S_W2, soff=S_SO, ld=8192, row0=q * 128, consume=wv_consume(q)))
    ld.run(pieces)

    L_MEMF = 128 * KB
    L_KX = 136 * KB
    L_Q = 144 * KB
    L_K = L_Q + 8 * 288
    L_O = L_K + 8 * 288
    V_IDX, V_SEL = 11, 12
    V_WV2 = 3
    V_QW, V_QR, V_KR, V_OW, V_OR, V_PW, V_KMS, V_L8, V_MF, V_ZERO = 16, 17, 18, 19, 20, 21, 22, 23, 24, 25
    k(f'v_mov_b32 {v(V_WV2)}, {v(V_WV)}')
    V_WV = V_WV2
    T0, T1, T2, T3 = 28, 29, 30, 31
    k(f'v_and_b32 {v(T0)}, 1, {v(V_LANE)}')
    k(f'v_cmp_eq_u32 vcc, 1, {v(T0)}')
    k(f'v_mov_b32 {v(T1)}, 0x4444')
    k(f'v_mov_b32 {v(T2)}, 0xeeee')
    k(f'v_cndmask_b32 {v(V_IDX)}, {v(T1)}, {v(T2)}, vcc')
    k(f'v_and_b32 {v(T0)}, 15, {v(V_LANE)}')
    for m in range(4):
        k(f'v_mov_b32 {v(T1)}, 0x3f80')
        k(f'v_mov_b32 {v(T2)}, 0x3f800000')
        k(f'v_cmp_eq_u32 vcc, {m}, {v(T0)}')
        k(f'v_cndmask_b32 {v(V_SEL + m)}, 0, {v(T1)}, vcc')
        k(f'v_cmp_eq_u32 vcc, {m + 4}, {v(T0)}')
        k(f'v_cndmask_b32 {v(V_SEL + m)}, {v(V_SEL + m)}, {v(T2)}, vcc')
    k(f'v_lshrrev_b32 {v(T1)}, 4, {v(V_LANE)}')
    k(f'v_mul_u32_u24 {v(T2)}, 576, {v(T1)}')
    k(f'v_lshl_add_u32 {v(T2)}, {v(T0)}, 2, {v(T2)}')
    k(f's_lshl_b32 {s(S_T0)}, {s(S_WAVE)}, 6')
    k(f's_add_u32 {s(S_T0)}, {s(S_T0)}, {L_Q}')
    k(f'v_add_u32 {v(V_QW)}, {s(S_T0)}, {v(T2)}')
    k(f'v_and_b32 {v(T2)}, 7, {v(V_LANE)}')
    k(f'v_mul_u32_u24 {v(T2)}, 288, {v(T2)}')
    k(f'v_lshl_add_u32 {v(T2)}, {v(T1)}, 4, {v(T2)}')
    k(f'v_add_u32 {v(V_QR)}, {L_Q}, {v(T2)}')
    k(f'v_lshrrev_b32 {v(T2)}, 2, {v(T0)}')
    k(f'v_and_b32 {v(T3)}, 1, {v(T0)}')
    k(f'v_lshl_add_u32 {v(T2)}, {v(T2)}, 1, {v(T3)}')
    k(f'v_lshl_add_u32 {v(T3)}, {v(T1)}, 3, {v(T2)}')
    k(f'v_lshlrev_b32 {v(V_KMS)}, 4, {v(T3)}')
    k(f'v_mul_u32_u24 {v(T2)}, 288, {v(T2)}')
    k(f'v_lshl_add_u32 {v(T2)}, {v(T1)}, 4, {v(T2)}')
    k(f'v_add_u32 {v(V_KR)}, {L_K}, {v(T2)}')
    k(f'v_and_b32 {v(T2)}, 7, {v(V_LANE)}')
    k(f'v_mul_u32_u24 {v(T2)}, 320, {v(T2)}')
    k(f'v_lshl_add_u32 {v(T2)}, {v(T1)}, 4, {v(T2)}')
    k(f's_lshl_b32 {s(S_T0)}, {s(S_WAVE)}, 6')
    k(f's_add_u32 {s(S_T0)}, {s(S_T0)}, {L_O}')
    k(f'v_add_u32 {v(V_OW)}, {s(S_T0)}, {v(T2)}')
    k(f'v_lshrrev_b32 {v(T2)}, 1, {v(T0)}')
    k(f'v_mul_u32_u24 {v(T2)}, 320, {v(T2)}')
    k(f'v_lshl_add_u32 {v(T2)}, {v(T1)}, 5, {v(T2)}')
    k(f'v_and_b32 {v(T3)}, 1, {v(T0)}')
    k(f'v_lshl_add_u32 {v(T2)}, {v(T3)}, 4, {v(T2)}')
    k(f'v_add_u32 {v(V_OR)}, {L_O}, {v(T2)}')
    k(f'v_lshrrev_b32 {v(T2)}, 2, {v(T0)}')
    k(f'v_lshlrev_b32 {v(T2)}, 13, {v(T2)}')
    k(f'v_and_b32 {v(T3)}, 3, {v(T0)}')
    k(f'v_lshl_add_u32 {v(T3)}, {v(T1)}, 2, {v(T3)}')
    k(f'v_lshl_add_u32 {v(V_PW)}, {v(T3)}, 4, {v(T2)}')
    k(f'v_lshlrev_b32 {v(V_L8)}, 3, {v(V_LANE)}')
    k(f's_lshl_b32 {s(S_T0)}, {s(S_WAVE)}, 11')
    k(f's_add_u32 {s(S_T0)}, {s(S_T0)}, {L_MEMF}')
    k(f'v_add_u32 {v(V_MF)}, {s(S_T0)}, {v(V_L16)}')
    k(f'v_mov_b32 {v(V_ZERO)}, 0')
    k(f's_mov_b32 {s(S_OMASK)}, 0x00ff00ff')
    k(f's_mov_b32 {s(S_OMASK + 1)}, 0x00ff00ff')
    k(f's_lshl_b32 {s(S_T0)}, {s(S_WAVE)}, 16')
    k(f's_add_u32 {s(S_PARTW)}, {s(S_PARTW)}, {s(S_T0)}')
    k(f's_lshl_b32 {s(S_T0)}, {s(S_H)}, 8')
    k(f's_add_u32 {s(S_PARTW)}, {s(S_PARTW)}, {s(S_T0)}')
    k(f's_lshl_b32 {s(S_KX)}, {s(S_L)}, 24')
    k(f's_lshl_b32 {s(S_T0)}, {s(S_H)}, 13')
    k(f's_add_u32 {s(S_KX)}, {s(S_KX)}, {s(S_T0)}')
    k(f's_lshl_b32 {s(S_T0)}, {s(S_WAVE)}, 11')
    k(f's_add_u32 {s(S_VX)}, {s(S_KX)}, {s(S_T0)}')
    k(f's_add_u32 {s(S_VX)}, {s(S_VX)}, {VBUF}')
    k(f's_lshl_b32 {s(S_T0)}, {s(S_WAVE)}, 10')
    k(f's_add_u32 {s(S_KX)}, {s(S_KX)}, {s(S_T0)}')
    k(f's_add_u32 {s(S_KX)}, {s(S_KX)}, {KBUF}')
    k(f's_lshl_b32 {s(S_FKV)}, {s(S_L)}, 14')
    k(f's_lshl_b32 {s(S_T0)}, {s(S_H)}, 4')
    k(f's_add_u32 {s(S_FKV)}, {s(S_FKV)}, {s(S_T0)}')
    k(f's_lshl_b32 {s(S_T0)}, {s(S_WAVE)}, 2')
    k(f's_add_u32 {s(S_FKV)}, {s(S_FKV)}, {s(S_T0)}')
    k(f's_add_u32 {s(S_FKV)}, {s(S_FKV)}, {F_KV}')
    k(f's_lshl_b32 {s(S_KMO)}, {s(S_L)}, 22')
    k(f's_lshl_b32 {s(S_T0)}, {s(S_H)}, 11')
    k(f's_add_u32 {s(S_KMO)}, {s(S_KMO)}, {s(S_T0)}')
    k(f's_lshl_b32 {s(S_T0)}, {s(S_WAVE)}, 9')
    k(f's_add_u32 {s(S_KMO)}, {s(S_KMO)}, {s(S_T0)}')
    k(f's_add_u32 {s(S_VMO)}, {s(S_KMO)}, {VM}')
    k(f's_add_u32 {s(S_KMO)}, {s(S_KMO)}, {KM}')
    k(f's_lshl_b32 {s(S_FCH)}, {s(S_L)}, 12')
    k(f's_lshl_b32 {s(S_T0)}, {s(S_H)}, 7')
    k(f's_add_u32 {s(S_FCH)}, {s(S_FCH)}, {s(S_T0)}')
    k(f's_lshl_b32 {s(S_T0)}, {s(S_WAVE)}, 2')
    k(f's_add_u32 {s(S_FCH)}, {s(S_FCH)}, {s(S_T0)}')
    k(f's_add_u32 {s(S_FCH)}, {s(S_FCH)}, {F_CH}')
    k(f's_mov_b32 {s(S_C)}, {f32(CSC)}')
    init_wait(k, T0, T1)
    if not (G.ENABLE['ao'] and G.ENABLE['ffn']):
        k(f's_cmp_eq_u32 {s(S_L)}, 1')
        k('s_cbranch_scc1 L_END')
    k(f's_lshl_b32 {s(S_T0)}, {s(S_L)}, 2')
    k(f'v_mov_b32 {v(T1)}, 16')
    k(f'buffer_load_dword {v(T0)}, {v(T1)}, {s(S_DBG, 4)}, {s(S_T0)} offen sc1')
    k('s_waitcnt vmcnt(0)')
    k(f'v_readfirstlane_b32 {s(S_T0)}, {v(T0)}')
    k(f's_bcnt1_i32_b32 {s(S_T0)}, {s(S_T0)}')
    k(f's_mov_b32 {s(S_S)}, 0')

    E = dict(locals())
    k(f's_cmp_eq_u32 {s(S_T0)}, 1')
    k('s_cbranch_scc0 L_CH_SLOW')
    chain_loop(k, E, True)
    k.label('L_CH_SLOW')
    chain_loop(k, E, False)


class Q:
    def __init__(self, k, name, maxn):
        self.k, self.name, self.maxn, self.q = k, name, maxn, []

    def issue(self, text, tag=None):
        self.k(text)
        self.q.append(tag)

    def wait(self, *tags):
        idx = max([i for i, t in enumerate(self.q) if t in tags], default=-1)
        if idx < 0:
            return
        n = len(self.q) - 1 - idx
        n = min(n, self.maxn)
        self.k(f's_waitcnt {self.name}({n})')
        self.q = self.q[len(self.q) - n:] if n else []

    def drain(self):
        self.k(f's_waitcnt {self.name}(0)')
        self.q = []


def chain_loop(k, E, fast):
    g = lambda n: E[n]
    (S_L, S_H, S_S, S_PARTR, S_PARTW, S_MEMB, S_KX, S_VX, S_FKV, S_KMO, S_VMO, S_FCH, S_A, S_B_, S_C, S_OMASK) = [g(n) for n in
        'S_L S_H S_S S_PARTR S_PARTW S_MEMB S_KX S_VX S_FKV S_KMO S_VMO S_FCH S_A S_B_ S_C S_OMASK'.split()]
    (V_SENT, V_PUB, V_IDX, V_SEL, V_WV, V_QW, V_QR, V_KR, V_OW, V_OR, V_PW, V_KMS, V_L8, V_MF, V_ZERO) = [g(n) for n in
        'V_SENT V_PUB V_IDX V_SEL V_WV V_QW V_QR V_KR V_OW V_OR V_PW V_KMS V_L8 V_MF V_ZERO'.split()]
    WQ, WK, WO = g('WQ'), g('WK'), g('WO')
    L_MEMF, L_KX, L_Q, L_K, L_O = [g(n) for n in 'L_MEMF L_KX L_Q L_K L_O'.split()]
    sc = '' if fast else ' sc1'
    tg_ = 'F' if fast else 'S'
    T0, T1, T2, T3 = 28, 29, 30, 31
    V_FLG, V_KRW = 26, 27
    V_LB = 0
    AF = 32
    DQK = 64
    WVS = 80
    DV = 112
    VX = 120
    GR = 80
    S_TS = 96
    lq = Q(k, 'lgkmcnt', 15)
    WS4 = s(S_WS, 4)
    UP = 128 * KB

    k(f'v_add_u32 {v(V_LB)}, {UP}, {v(V_L16)}')
    k(f's_lshl_b32 {s(S_T0)}, {s(S_WAVE)}, 6')
    k(f'v_add_u32 {v(V_KRW)}, {s(S_T0)}, {v(V_KR)}')

    def kv_prefetch(first):
        lp = k.newlabel('CKV')
        ok = k.newlabel('CKVOK')
        k(f's_lshr_b32 {s(S_T0)}, {s(S_B_)}, 1')
        k(f's_lshl_b32 {s(S_T0)}, {s(S_T0)}, 9')
        k(f's_add_u32 {s(S_T1)}, {s(S_T0)}, {s(S_FKV)}')
        if not first:
            k(f'v_readfirstlane_b32 {s(S_T0)}, {v(V_FLG)}')
            k(f's_cmp_lg_u32 {s(S_T0)}, 0')
            k(f's_cbranch_scc1 {ok}')
        k.label(lp)
        k(f'buffer_load_dword {v(V_FLG)}, {v(V_ZERO)}, {WS4}, {s(S_T1)} offen sc1')
        k('s_waitcnt vmcnt(0)')
        k(f'v_readfirstlane_b32 {s(S_T0)}, {v(V_FLG)}')
        k(f's_cmp_lg_u32 {s(S_T0)}, 0')
        k(f's_cbranch_scc1 {ok}')
        spin_check(k, 4)
        k('s_sleep 1')
        k(f's_branch {lp}')
        k.label(ok)
        k(f's_mov_b32 {s(S_SPIN)}, 0')
        k(f's_lshl_b32 {s(S_T0)}, {s(S_B_)}, 18')
        k(f's_add_u32 {s(S_T1)}, {s(S_T0)}, {s(S_KX)}')
        k(f's_lshl_b32 {s(S_T2)}, {s(S_WAVE)}, 10')
        k(f's_add_u32 m0, {s(S_T2)}, {L_KX}')
        k(f's_add_u32 {s(S_T0)}, {s(S_T0)}, {s(S_VX)}')
        k(f'buffer_load_dwordx4 {v(V_L16)}, {WS4}, {s(S_T1)} offen sc1 lds')
        k('s_add_u32 m0, m0, 4096')
        k(f's_add_u32 {s(S_T1)}, {s(S_T1)}, 4096')
        k(f'buffer_load_dwordx4 {v(V_L16)}, {WS4}, {s(S_T1)} offen sc1 lds')
        for i in range(2):
            k(f'buffer_load_dwordx4 {v(VX + 4 * i, 4)}, {v(V_L16)}, {WS4}, {s(S_T0)} offen offset:{i * 1024} sc1')

    NST = 12
    def stamp(i):
        if not G.TIMING:
            return
        k(f's_memtime {s(98, 2)}')
        k('s_waitcnt lgkmcnt(0)')
        lq.q = []
        k(f's_sub_u32 {s(101)}, {s(98)}, {s(100)}')
        k(f's_add_u32 {s(4 + i)}, {s(4 + i)}, {s(101)}')
        k(f's_mov_b32 {s(100)}, {s(98)}')

    k(f's_mov_b32 {s(S_B_)}, 0')
    kv_prefetch(True)
    if G.TIMING:
        k(f's_memtime {s(S_TS, 2)}')
        k('s_waitcnt lgkmcnt(0)')
        k(f's_mov_b32 {s(100)}, {s(S_TS)}')
        for i in range(NST):
            k(f's_mov_b32 {s(4 + i)}, 0')
    top = f'L_CH_TOP{tg_}'
    k.label(top)
    for i in range(16):
        k(f'v_mov_b32 {v(DQK + i)}, 0')
    for i in range(8):
        k(f'v_mov_b32 {v(DV + i)}, 0')
    k(f's_and_b32 {s(S_T0)}, {s(S_S)}, 3')
    k(f's_lshl_b32 {s(S_T0)}, {s(S_T0)}, 13')
    k(f's_add_u32 {s(S_T0)}, {s(S_T0)}, {s(S_MEMB)}')
    k(f's_lshl_b32 {s(S_T1)}, {s(S_WAVE)}, 11')
    k(f's_add_u32 {s(S_T1)}, {s(S_T1)}, {s(S_T0)}')
    gl = k.newlabel('CG')
    gd = k.newlabel('CGD')
    k.label(gl)
    for i in range(2):
        k(f'buffer_load_dwordx4 {v(GR + 4 * i, 4)}, {v(V_L16)}, {WS4}, {s(S_T1)} offen offset:{i * 1024} sc1')
    k('s_waitcnt vmcnt(0)')
    k(f'v_max_u32 {v(T0)}, {v(GR + 1)}, {v(GR + 3)}')
    k(f'v_max3_u32 {v(T0)}, {v(T0)}, {v(GR + 5)}, {v(GR + 7)}')
    k(f'v_cmp_eq_u32 vcc, -1, {v(T0)}')
    k(f's_cbranch_vccz {gd}')
    spin_check(k, 5)
    k(f's_branch {gl}')
    k.label(gd)
    stamp(0)
    for i in range(2):
        k(f'ds_write_b128 {v(V_MF)}, {v(GR + 4 * i, 4)} offset:{i * 1024}')
    k(f's_mov_b32 {s(S_SPIN)}, 0')
    set_flag(k, S_FCH, T0, val_sgpr=S_S)
    k('s_waitcnt lgkmcnt(0)')
    k('s_barrier')
    stamp(1)
    for kb in range(8):
        lq.issue(f'ds_read_b128 {v(AF + 4 * kb, 4)}, {v(V_LB)} offset:{L_MEMF - UP + kb * 1024}', ('af', kb))

    def wv_read(kb):
        for odd in range(2):
            for hf in range(2):
                lq.issue(f'ds_read_b128 {v(WVS + ((kb & 1) * 2 + odd) * 8 + 4 * hf, 4)}, {v(V_WV)} offset:{((kb * 2 + odd) * 2 + hf) * 1024}',
                         ('wv', kb))
    wv_read(0)
    wv_read(1)
    sk = k.newlabel('CR')
    k(f's_cmp_lg_u32 {s(S_WAVE)}, 0')
    k(f's_cbranch_scc1 {sk}')
    k(f's_and_b32 {s(S_T0)}, {s(S_S)}, 1')
    k(f's_xor_b32 {s(S_T0)}, {s(S_T0)}, 1')
    k(f's_lshl_b32 {s(S_T0)}, {s(S_T0)}, 18')
    k(f's_add_u32 {s(S_T0)}, {s(S_T0)}, {s(S_PARTR)}')
    for i in range(8):
        if i == 4:
            k(f's_add_u32 {s(S_T0)}, {s(S_T0)}, 4096')
        k(f'buffer_store_dwordx4 {v(V_SENT, 4)}, {v(V_L16)}, {WS4}, {s(S_T0)} offen offset:{(i & 3) * 1024}{sc}')
    k.label(sk)
    k(f's_add_u32 {s(S_B_)}, {s(S_S)}, 1')
    k(f's_min_u32 {s(S_B_)}, {s(S_B_)}, 63')
    k(f's_lshr_b32 {s(S_T0)}, {s(S_B_)}, 1')
    k(f's_lshl_b32 {s(S_T0)}, {s(S_T0)}, 9')
    k(f's_add_u32 {s(S_T1)}, {s(S_T0)}, {s(S_FKV)}')
    k(f'buffer_load_dword {v(V_FLG)}, {v(V_ZERO)}, {WS4}, {s(S_T1)} offen sc1')
    for kb in range(8):
        lq.wait(('af', kb), ('wv', kb))
        A = v(AF + 4 * kb, 4)
        for odd in range(2):
            k(f'v_smfmac_f32_16x16x64_bf16 {v(DQK + 4 * odd, 4)}, {A}, {a(WQ(odd, kb), 8)}, {v(V_IDX)}')
        for odd in range(2):
            k(f'v_smfmac_f32_16x16x64_bf16 {v(DQK + 8 + 4 * odd, 4)}, {A}, {a(WK(odd, kb), 8)}, {v(V_IDX)}')
        for odd in range(2):
            k(f'v_smfmac_f32_16x16x64_bf16 {v(DV + 4 * odd, 4)}, {A}, {v(WVS + ((kb & 1) * 2 + odd) * 8, 8)}, {v(V_IDX)}')
        if kb + 2 < 8:
            wv_read(kb + 2)
        lq.issue(f'ds_read_b128 {v(AF + 4 * kb, 4)}, {v(V_LB)} offset:{L_KX - UP + kb * 1024}', 'kx')
    KXR = AF
    stamp(2)
    for m in range(2):
        D = DQK + 8 * m
        for odd in range(2):
            k(f'v_add_f32 {v(D + 4 * odd)}, {v(D + 4 * odd)}, {v(D + 4 * odd + 1)}')
            k(f'v_add_f32 {v(D + 4 * odd + 2)}, {v(D + 4 * odd + 2)}, {v(D + 4 * odd + 3)}')
        for row in range(2):
            k(f'v_cvt_pk_bf16_f32 {v(T0 + row)}, {v(D + 2 * row)}, {v(D + 4 + 2 * row)}')
        for row in range(2):
            lq.issue(f'ds_write_b32 {v(V_QW)}, {v(T0 + row)} offset:{m * 8 * 288 + row * 288}')
    VMP = 72
    for odd in range(2):
        k(f'v_add_f32 {v(DV + 4 * odd)}, {v(DV + 4 * odd)}, {v(DV + 4 * odd + 1)}')
        k(f'v_add_f32 {v(DV + 4 * odd + 2)}, {v(DV + 4 * odd + 2)}, {v(DV + 4 * odd + 3)}')
    for odd in range(2):
        k(f'v_cvt_pk_bf16_f32 {v(T2 + odd)}, {v(DV + 4 * odd)}, {v(DV + 4 * odd + 2)}')
    k(f's_lshl_b32 {s(S_T0)}, {s(S_S)}, 16')
    k(f's_add_u32 {s(S_T1)}, {s(S_T0)}, {s(S_VMO)}')
    k(f'buffer_store_dwordx2 {v(T2, 2)}, {v(V_L8)}, {WS4}, {s(S_T1)} offen sc1')
    lq.drain()
    stamp(3)
    k('s_barrier')
    stamp(4)
    QF, KMF, KMW = 80, 96, 76
    for eb in range(4):
        lq.issue(f'ds_read_b128 {v(QF + 4 * eb, 4)}, {v(V_QR)} offset:{eb * 64}', ('q', eb))
        lq.issue(f'ds_read_b128 {v(KMF + 4 * eb, 4)}, {v(V_KR)} offset:{eb * 64}', ('q', eb))
    lq.issue(f'ds_read_b128 {v(KMW, 4)}, {v(V_KRW)}', 'kmw')
    k(f'v_mov_b32 {v(VMP)}, {v(T2)}')
    k(f'v_mov_b32 {v(VMP + 1)}, 0')
    k(f'v_mov_b32 {v(VMP + 2)}, {v(T3)}')
    k(f'v_mov_b32 {v(VMP + 3)}, 0')
    SA, SB, SM = 112, 116, 64
    for eb in range(4):
        lq.wait(('q', eb))
        q = v(QF + 4 * eb, 4)
        c = lambda r: '0' if eb == 0 else v(r, 4)
        k(f'v_mfma_f32_16x16x32_bf16 {v(SA, 4)}, {v(KXR + 4 * eb, 4)}, {q}, {c(SA)}')
        k(f'v_mfma_f32_16x16x32_bf16 {v(SB, 4)}, {v(KXR + 16 + 4 * eb, 4)}, {q}, {c(SB)}')
        k(f'v_mfma_f32_16x16x32_bf16 {v(SM, 4)}, {v(KMF + 4 * eb, 4)}, {q}, {c(SM)}')
    lq.drain()
    k(f's_add_u32 {s(S_T1)}, {s(S_T0)}, {s(S_KMO)}')
    k(f'buffer_store_dwordx4 {v(KMW, 4)}, {v(V_KMS)}, {WS4}, {s(S_T1)} offen sc1')
    k(f's_cmp_eq_u32 {s(S_S)}, 63')
    k(f's_cbranch_scc1 L_CH_FIN{tg_}')
    stamp(5)
    OACC = 32
    for i in range(32):
        k(f'v_mov_b32 {v(OACC + i)}, 0')
    vals = [SA, SA + 1, SA + 2, SA + 3, SB, SB + 1, SB + 2, SB + 3, SM, SM + 1]
    k(f'v_max3_f32 {v(T0)}, {v(vals[0])}, {v(vals[1])}, {v(vals[2])}')
    k(f'v_max3_f32 {v(T1)}, {v(vals[3])}, {v(vals[4])}, {v(vals[5])}')
    k(f'v_max3_f32 {v(T0)}, {v(T0)}, {v(vals[6])}, {v(vals[7])}')
    k(f'v_max3_f32 {v(T1)}, {v(T1)}, {v(vals[8])}, {v(vals[9])}')
    k(f'v_max_f32 {v(T0)}, {v(T0)}, {v(T1)}')
    xlane_reduce(k, 'v_max_f32', T0, T1)
    k(f'v_mul_f32 {v(T0)}, {s(S_C)}, {v(T0)}')
    for x in vals:
        k(f'v_fma_f32 {v(x)}, {v(x)}, {s(S_C)}, -{v(T0)}')
    for x in vals:
        k(f'v_exp_f32 {v(x)}, {v(x)}')
    k(f'v_add_f32 {v(T0)}, {v(vals[0])}, {v(vals[1])}')
    k(f'v_add_f32 {v(T1)}, {v(vals[2])}, {v(vals[3])}')
    for i in range(4, 10, 2):
        k(f'v_add_f32 {v(T0)}, {v(T0)}, {v(vals[i])}')
        k(f'v_add_f32 {v(T1)}, {v(T1)}, {v(vals[i + 1])}')
    k(f'v_add_f32 {v(T0)}, {v(T0)}, {v(T1)}')
    xlane_reduce(k, 'v_add_f32', T0, T1)
    k(f'v_rcp_f32 {v(T0)}, {v(T0)}')
    for x in vals:
        k(f'v_mul_f32 {v(x)}, {v(x)}, {v(T0)}')
    PX, PM = 80, 84
    for i in range(4):
        k(f'v_cvt_pk_bf16_f32 {v(PX + i)}, {v(vals[2 * i])}, {v(vals[2 * i + 1])}')
    k(f'v_cvt_pk_bf16_f32 {v(PM)}, {v(SM)}, {v(SM + 1)}')
    k(f'v_mov_b32 {v(PM + 1)}, 0')
    stamp(6)
    PO = 88
    for odd in range(2):
        k(f'v_mfma_f32_16x16x32_bf16 {v(PO + 4 * odd, 4)}, {v(VX + 4 * odd, 4)}, {v(PX, 4)}, 0')
    for odd in range(2):
        k(f'v_mfma_f32_16x16x16_bf16 {v(PO + 4 * odd, 4)}, {v(VMP + 2 * odd, 2)}, {v(PM, 2)}, {v(PO + 4 * odd, 4)}')
    OP = 96
    for i in range(4):
        k(f'v_cvt_pk_bf16_f32 {v(OP + i)}, {v(PO + 2 * i)}, {v(PO + 2 * i + 1)}')
    k(f's_mov_b64 exec, {s(S_OMASK, 2)}')
    k(f'ds_write_b128 {v(V_OW)}, {v(OP, 4)}')
    k('s_mov_b64 exec, -1')
    k('s_waitcnt lgkmcnt(0)')
    k('s_barrier')
    stamp(7)
    OF = 100
    for kb in range(2):
        k(f'ds_read_b128 {v(OF + 4 * kb, 4)}, {v(V_OR)} offset:{kb * 128}')
    k('s_waitcnt vmcnt(2)')
    kv_prefetch(False)
    k(f's_and_b32 {s(S_T0)}, {s(S_S)}, 1')
    k(f's_lshl_b32 {s(S_T0)}, {s(S_T0)}, 18')
    k(f's_add_u32 {s(S_T1)}, {s(S_T0)}, {s(S_PARTW)}')
    k(f's_add_u32 {s(S_T2)}, {s(S_T0)}, {s(S_PARTR)}')
    k('s_waitcnt lgkmcnt(0)')
    stamp(8)
    PK = 64
    for tg in range(2):
        for kb in range(2):
            for t in range(4):
                k(f'v_smfmac_f32_16x16x64_bf16 {v(OACC + (tg * 4 + t) * 4, 4)}, {v(OF + 4 * kb, 4)}, {v(WO(tg, t, kb), 8)}, {v(V_IDX)}')
    for tg in range(2):
        for t in range(4):
            D = OACC + (tg * 4 + t) * 4
            k(f'v_add_f32 {v(D)}, {v(D)}, {v(D + 1)}')
            k(f'v_add_f32 {v(D + 2)}, {v(D + 2)}, {v(D + 3)}')
            k(f'v_cvt_pk_bf16_f32 {v(PK + tg * 4 + t)}, {v(D)}, {v(D + 2)}')
        k(f'v_min_u32 {v(PK + tg * 4 + 3)}, -2, {v(PK + tg * 4 + 3)}')
        k(f'buffer_store_dwordx4 {v(PK + tg * 4, 4)}, {v(V_PW)}, {WS4}, {s(S_T1)} offen{sc}')
        if tg == 0:
            k(f's_add_u32 {s(S_T1)}, {s(S_T1)}, 32768')
    stamp(9)
    rs = k.newlabel('CRS')
    k(f's_cmp_lg_u32 {s(S_WAVE)}, 0')
    k(f's_cbranch_scc1 {rs}')
    RL = 32
    rl = k.newlabel('CRL')
    rdn = k.newlabel('CRD')
    k(f's_add_u32 {s(S_T1)}, {s(S_T2)}, 4096')
    k.label(rl)
    for i in range(8):
        k(f'buffer_load_dwordx4 {v(RL + 4 * i, 4)}, {v(V_L16)}, {WS4}, {s(S_T2 if i < 4 else S_T1)} offen offset:{(i & 3) * 1024} sc1')
    k('s_waitcnt vmcnt(0)')
    k(f'v_max3_u32 {v(T0)}, {v(RL + 3)}, {v(RL + 7)}, {v(RL + 11)}')
    k(f'v_max3_u32 {v(T1)}, {v(RL + 15)}, {v(RL + 19)}, {v(RL + 23)}')
    k(f'v_max3_u32 {v(T0)}, {v(T0)}, {v(RL + 27)}, {v(RL + 31)}')
    k(f'v_max_u32 {v(T0)}, {v(T0)}, {v(T1)}')
    k(f'v_cmp_eq_u32 vcc, -1, {v(T0)}')
    k(f's_cbranch_vccz {rdn}')
    spin_check(k, 6)
    k(f's_branch {rl}')
    k.label(rdn)
    stamp(10)
    RA = 112
    for i in range(8):
        k(f'v_mfma_f32_16x16x32_bf16 {v(RA, 4)}, {v(V_SEL, 4)}, {v(RL + 4 * i, 4)}, {"0" if i == 0 else v(RA, 4)}')
    k(f's_add_u32 {s(S_T0)}, {s(S_S)}, 1')
    k(f's_and_b32 {s(S_T0)}, {s(S_T0)}, 3')
    k(f's_lshl_b32 {s(S_T0)}, {s(S_T0)}, 13')
    k(f's_add_u32 {s(S_T0)}, {s(S_T0)}, {s(S_A)}')
    k(f's_and_b32 {s(S_T1)}, {s(S_S)}, 3')
    k(f's_lshl_b32 {s(S_T1)}, {s(S_T1)}, 13')
    k(f's_add_u32 {s(S_T1)}, {s(S_T1)}, {s(S_A)}')
    k(f's_mov_b32 {s(S_SPIN)}, 0')
    k(f'v_cvt_pk_bf16_f32 {v(T0)}, {v(RA)}, {v(RA + 1)}')
    k(f'v_cvt_pk_bf16_f32 {v(T1)}, {v(RA + 2)}, {v(RA + 3)}')
    k(f'v_min_u32 {v(T1)}, -2, {v(T1)}')
    k(f's_mov_b64 exec, {s(S_LO32, 2)}')
    k(f'buffer_store_dwordx2 {v(T0, 2)}, {v(V_PUB)}, {WS4}, {s(S_T0)} offen{sc}')
    k(f'buffer_store_dwordx2 {v(V_SENT, 2)}, {v(V_PUB)}, {WS4}, {s(S_T1)} offen{sc}')
    k('s_mov_b64 exec, -1')
    k.label(rs)
    k('s_barrier')
    stamp(11)
    k(f's_add_u32 {s(S_S)}, {s(S_S)}, 1')
    k(f's_branch {top}')
    k.label(f'L_CH_FIN{tg_}')
    k('s_waitcnt vmcnt(0)')
    set_flag(k, S_FCH, T0, val=64)
    if G.TIMING:
        k(f's_memtime {s(S_TS + 2, 2)}')
        k('s_waitcnt lgkmcnt(0)')
        k(f's_sub_u32 {s(S_T0)}, {s(S_TS + 2)}, {s(S_TS)}')
        k('s_mov_b64 exec, 1')
        k(f'v_mov_b32 {v(T0)}, {s(S_T0)}')
        k(f's_lshl_b32 {s(S_T1)}, {s(S_L)}, 2')
        k(f'v_mov_b32 {v(T1)}, {64 + (0 if fast else 8)}')
        k(f'buffer_store_dword {v(T0)}, {v(T1)}, {s(S_DBG, 4)}, {s(S_T1)} offen sc1')
        k(f's_lshl_b32 {s(S_T0)}, {s(S_ROLE)}, 2')
        k(f's_add_u32 {s(S_T0)}, {s(S_T0)}, {s(S_WAVE)}')
        k(f's_cmp_gt_u32 {s(S_T0)}, 1')
        k('s_cbranch_scc1 L_END')
        k(f's_mul_i32 {s(S_T1)}, {s(S_WAVE)}, 48')
        for i in range(NST):
            k(f'v_mov_b32 {v(T0)}, {s(4 + i)}')
            k(f'v_mov_b32 {v(T1)}, {96 + 4 * i}')
            k(f'buffer_store_dword {v(T0)}, {v(T1)}, {s(S_DBG, 4)}, {s(S_T1)} offen sc1')
    k('s_branch L_END')


def outproj(k, lq, nkb, Wfn, v_lds, lds_off, s_dst, v_st, XF, ACC, OUT):
    def rd(tt):
        for kb in range(nkb):
            lq.issue(f'ds_read_b128 {v(XF + ((tt & 1) * nkb + kb) * 4, 4)}, {v(v_lds)} offset:{lds_off + (tt * nkb + kb) * 1024}', ('x', tt, kb))

    def epi(tt, st):
        acc = ACC + (tt & 1) * 32 + st * 8
        o = OUT + st * 4
        for i in range(4):
            k(f'v_cvt_pk_bf16_f32 {v(o + i)}, {v(acc + 2 * i)}, {v(acc + 2 * i + 1)}')
        if st == 0:
            k(f's_add_u32 {s(S_T0)}, {s(s_dst)}, {tt * 16384}')
        k(f'buffer_store_dwordx4 {v(o, 4)}, {v(v_st)}, {s(S_WS, 4)}, {s(S_T0)} offen offset:{st * 64} sc1')
    rd(0)
    for tt in range(4):
        if tt < 3:
            rd(tt + 1)
        for kb in range(nkb):
            lq.wait(('x', tt, kb))
            x = v(XF + ((tt & 1) * nkb + kb) * 4, 4)
            for st in range(4):
                for odd in range(2):
                    acc = ACC + (tt & 1) * 32 + st * 8 + odd * 4
                    c = '0' if kb == 0 else v(acc, 4)
                    k(f'v_mfma_f32_16x16x32_bf16 {v(acc, 4)}, {R(*Wfn(st, odd, kb), 4)}, {x}, {c}')
            if tt > 0 and kb < 4:
                epi(tt - 1, kb)
    for st in range(4):
        epi(3, st)


def role_ao(k):
    k.label('L_AO')
    (S_HP, S_RP, S_LDS, S_OFF, S_SO, S_B1, S_B2, S_L, S_B, S_SRC, S_MSRC, S_DST, S_FO, S_C) = range(70, 84)
    S_MK = 84
    k(f's_sub_u32 {s(S_HP)}, {s(S_ROLE)}, {R_AO}')
    k(f's_lshr_b32 {s(S_RP)}, {s(S_HP)}, 4')
    k(f's_and_b32 {s(S_HP)}, {s(S_HP)}, 15')
    init_arrive(k)
    srd(k, S_W0, P_WO, 4 * MB)
    k(f's_lshl_b32 {s(S_LDS)}, {s(S_WAVE)}, 15')
    k(f's_lshl_b32 {s(S_SO)}, {s(S_HP)}, 18')
    k(f's_lshl_b32 {s(S_T0)}, {s(S_WAVE)}, 8')
    k(f's_add_u32 {s(S_SO)}, {s(S_SO)}, {s(S_T0)}')
    V_TR = 8
    dense_tr_addr(k, V_TR, S_LDS)
    ld = Loader(k, 9, S_LDS, S_OFF)
    WO = lambda st, odd, kb: ('a', ((st * 2 + odd) * 8 + kb) * 4)
    pieces = []
    for st in range(4):
        for q in range(2):
            pieces.append(dict(srd=S_W0, soff=S_SO, ld=1024, row0=q * 128, coff=st * 64,
                               consume=dense_consume(k, V_TR, (lambda st, q: lambda odd, kb: WO(st, odd, q * 4 + kb))(st, q))))
    ld.run(pieces)
    V_PB, V_PS, V_T0, V_TS, VT = 8, 9, 10, 11, 12
    V_KMS, V_L8, V_ST, V_OW, V_NEG = 16, 17, 18, 19, 20
    T0, T1, T2, T3 = 24, 25, 26, 27
    k(f'v_and_b32 {v(T0)}, 7, {v(V_LANE)}')
    k(f'v_bfe_u32 {v(T1)}, {v(V_LANE)}, 3, 2')
    k(f's_lshl_b32 {s(S_T0)}, {s(S_HP)}, 5')
    k(f'v_lshl_add_u32 {v(T2)}, {v(T0)}, 2, {s(S_T0)}')
    k(f'v_mov_b32 {v(T3)}, 16384')
    k(f'v_cndmask_b32 {v(T3)}, 0, {v(T3)}, {s(S_LO32, 2)}')
    k(f'v_add_u32 {v(T2)}, {v(T2)}, {v(T3)}')
    k(f'v_add_u32 {v(V_PB)}, {F_KV}, {v(T2)}')
    k(f'v_add_u32 {v(T2)}, {F_Q}, {v(T2)}')
    k(f'v_cmp_eq_u32 vcc, 1, {v(T1)}')
    k(f'v_cndmask_b32 {v(V_PB)}, {v(V_PB)}, {v(T2)}, vcc')
    k(f'v_lshrrev_b32 {v(T3)}, 2, {v(T3)}')
    k(f'v_lshrrev_b32 {v(T2)}, 2, {v(T0)}')
    k(f'v_lshl_add_u32 {v(T3)}, {v(T2)}, 7, {v(T3)}')
    k(f'v_and_b32 {v(T2)}, 3, {v(T0)}')
    k(f'v_lshl_add_u32 {v(T3)}, {v(T2)}, 2, {v(T3)}')
    k(f's_lshl_b32 {s(S_T0)}, {s(S_HP)}, 8')
    k(f's_add_u32 {s(S_T0)}, {s(S_T0)}, {F_CH}')
    k(f'v_add_u32 {v(T3)}, {s(S_T0)}, {v(T3)}')
    k(f'v_cmp_eq_u32 vcc, 2, {v(T1)}')
    k(f'v_cndmask_b32 {v(V_PB)}, {v(V_PB)}, {v(T3)}, vcc')
    k(f'v_mov_b32 {v(T2)}, 512')
    k(f'v_cndmask_b32 {v(V_PS)}, {v(T2)}, 0, vcc')
    k(f'v_cndmask_b32 {v(V_T0)}, 1, 2, vcc')
    k(f'v_cndmask_b32 {v(V_TS)}, 0, 2, vcc')
    k(f'v_and_b32 {v(T0)}, 15, {v(V_LANE)}')
    k(f'v_lshrrev_b32 {v(T1)}, 4, {v(V_LANE)}')
    k(f'v_lshrrev_b32 {v(T2)}, 2, {v(T0)}')
    k(f'v_and_b32 {v(T3)}, 1, {v(T0)}')
    k(f'v_lshl_add_u32 {v(T2)}, {v(T2)}, 1, {v(T3)}')
    k(f'v_lshl_add_u32 {v(T2)}, {v(T1)}, 3, {v(T2)}')
    k(f'v_lshlrev_b32 {v(V_KMS)}, 4, {v(T2)}')
    k(f'v_lshlrev_b32 {v(V_L8)}, 3, {v(V_LANE)}')
    k(f'v_lshlrev_b32 {v(T2)}, 10, {v(T0)}')
    k(f'v_lshl_add_u32 {v(V_ST)}, {v(T1)}, 4, {v(T2)}')
    k(f's_and_b32 {s(S_T0)}, {s(S_WAVE)}, 1')
    k(f's_lshl_b32 {s(S_T0)}, {s(S_T0)}, 14')
    k(f's_lshr_b32 {s(S_T1)}, {s(S_WAVE)}, 1')
    k(f's_lshl_b32 {s(S_T1)}, {s(S_T1)}, 12')
    k(f's_add_u32 {s(S_T0)}, {s(S_T0)}, {s(S_T1)}')
    k(f'v_add_u32 {v(V_OW)}, {s(S_T0)}, {v(V_L16)}')
    k(f'v_mov_b32 {v(V_NEG)}, 0xff800000')
    for r in range(4):
        k(f'v_lshl_add_u32 {v(T2)}, {v(T1)}, 2, {r}')
        k(f'v_cmp_le_u32 {s(S_MK + 2 * r, 2)}, {v(T2)}, {v(T0)}')
    k(f's_mov_b32 {s(S_C)}, {f32(CSC)}')
    k(f's_mov_b32 {s(S_B1)}, {s(S_RP)}')
    k(f's_mov_b32 {s(S_B2)}, {s(S_RP)}')
    if not G.ENABLE['ffn']:
        k(f's_mov_b32 {s(S_B2)}, 64')
    QF, KF, VF, KMF, VMF = 32, 64, 96, 128, 144
    for i in range(8):
        k(f'v_mov_b32 {v(VMF + 2 * i + 1)}, 0')
    init_wait(k, T0, T1)
    k('s_barrier')
    WS4 = s(S_WS, 4)
    lq = Q(k, 'lgkmcnt', 15)
    vq = Q(k, 'vmcnt', 63)
    k.label('L_AO_LOOP')
    pick(k, S_B1, S_B2, 3, V_PB, V_PS, V_T0, V_TS, VT, S_L, S_B, 64 * KB, 'L_END', 7)
    k(f's_lshl_b32 {s(S_T0)}, {s(S_B)}, 1')
    k(f's_and_b32 {s(S_T1)}, {s(S_WAVE)}, 1')
    k(f's_add_u32 {s(S_T0)}, {s(S_T0)}, {s(S_T1)}')
    k(f's_lshl_b32 {s(S_T0)}, {s(S_T0)}, 5')
    k(f's_lshl_b32 {s(S_T1)}, {s(S_HP)}, 1')
    k(f's_add_u32 {s(S_T0)}, {s(S_T0)}, {s(S_T1)}')
    k(f's_lshr_b32 {s(S_T1)}, {s(S_WAVE)}, 1')
    k(f's_add_u32 {s(S_T0)}, {s(S_T0)}, {s(S_T1)}')
    k(f's_lshl_b32 {s(S_T1)}, {s(S_L)}, 11')
    k(f's_add_u32 {s(S_T0)}, {s(S_T0)}, {s(S_T1)}')
    k(f's_lshl_b32 {s(S_SRC)}, {s(S_T0)}, 13')
    k(f's_lshl_b32 {s(S_MSRC)}, {s(S_T0)}, 11')

    def ld8(base, reg, tag):
        for hf in range(2):
            k(f's_add_u32 {s(S_T0)}, {s(S_SRC)}, {base + hf * 4096}')
            for i in range(4):
                vq.issue(f'buffer_load_dwordx4 {v(reg + (hf * 4 + i) * 4, 4)}, {v(V_L16)}, {WS4}, {s(S_T0)} offen offset:{i * 1024} sc1', tag)
    ld8(QB, QF, 'q')
    ld8(KBUF, KF, 'k')
    k(f's_add_u32 {s(S_T0)}, {s(S_MSRC)}, {KM}')
    for eb in range(4):
        vq.issue(f'buffer_load_dwordx4 {v(KMF + 4 * eb, 4)}, {v(V_KMS)}, {WS4}, {s(S_T0)} offen offset:{eb * 512} sc1', 'k')
    ld8(VBUF, VF, 'v')
    k(f's_add_u32 {s(S_T0)}, {s(S_MSRC)}, {VM}')
    for et in range(8):
        vq.issue(f'buffer_load_dword {v(VMF + 2 * et)}, {v(V_L8)}, {WS4}, {s(S_T0)} offen offset:{(et >> 1) * 512 + (et & 1) * 4} sc1', 'v')
    k(f's_lshl_b32 {s(S_DST)}, {s(S_HP)}, 21')
    k(f's_lshl_b32 {s(S_T0)}, {s(S_B)}, 16')
    k(f's_add_u32 {s(S_DST)}, {s(S_DST)}, {s(S_T0)}')
    k(f's_lshl_b32 {s(S_T0)}, {s(S_WAVE)}, 8')
    k(f's_add_u32 {s(S_DST)}, {s(S_DST)}, {s(S_T0)}')
    k(f's_add_u32 {s(S_DST)}, {s(S_DST)}, {PA}')
    k(f's_lshl_b32 {s(S_FO)}, {s(S_L)}, 13')
    k(f's_lshl_b32 {s(S_T0)}, {s(S_B)}, 8')
    k(f's_add_u32 {s(S_FO)}, {s(S_FO)}, {s(S_T0)}')
    k(f's_lshl_b32 {s(S_T0)}, {s(S_HP)}, 4')
    k(f's_add_u32 {s(S_FO)}, {s(S_FO)}, {s(S_T0)}')
    k(f's_lshl_b32 {s(S_T0)}, {s(S_WAVE)}, 2')
    k(f's_add_u32 {s(S_FO)}, {s(S_FO)}, {s(S_T0)}')
    k(f's_add_u32 {s(S_FO)}, {s(S_FO)}, {F_AO}')
    vq.wait('k')
    SA0, SM0, SA1, SB1, SM1 = 160, 164, 168, 172, 176
    for eb in range(4):
        c = lambda r: '0' if eb == 0 else v(r, 4)
        q0, q1 = v(QF + 4 * eb, 4), v(QF + 16 + 4 * eb, 4)
        ka, kb_, km = v(KF + 4 * eb, 4), v(KF + 16 + 4 * eb, 4), v(KMF + 4 * eb, 4)
        k(f'v_mfma_f32_16x16x32_bf16 {v(SA0, 4)}, {ka}, {q0}, {c(SA0)}')
        k(f'v_mfma_f32_16x16x32_bf16 {v(SM0, 4)}, {km}, {q0}, {c(SM0)}')
        k(f'v_mfma_f32_16x16x32_bf16 {v(SA1, 4)}, {ka}, {q1}, {c(SA1)}')
        k(f'v_mfma_f32_16x16x32_bf16 {v(SB1, 4)}, {kb_}, {q1}, {c(SB1)}')
        k(f'v_mfma_f32_16x16x32_bf16 {v(SM1, 4)}, {km}, {q1}, {c(SM1)}')
    PX0, PM0, PX1, PM1 = 180, 184, 188, 192
    k(f'v_mov_b32 {v(PX0 + 2)}, 0')
    k(f'v_mov_b32 {v(PX0 + 3)}, 0')
    k(f'v_mov_b32 {v(PM0 + 1)}, 0')
    k(f'v_mov_b32 {v(PM1 + 1)}, 0')
    for r in range(4):
        k(f'v_cndmask_b32 {v(SA0 + r)}, {v(V_NEG)}, {v(SA0 + r)}, {s(S_MK + 2 * r, 2)}')
    for r in range(4):
        k(f'v_cndmask_b32 {v(SB1 + r)}, {v(V_NEG)}, {v(SB1 + r)}, {s(S_MK + 2 * r, 2)}')
    v0 = [SA0, SA0 + 1, SA0 + 2, SA0 + 3, SM0, SM0 + 1]
    v1 = [SA1, SA1 + 1, SA1 + 2, SA1 + 3, SB1, SB1 + 1, SB1 + 2, SB1 + 3, SM1, SM1 + 1]
    if G.MIMIC:
        K2 = 196
        k(f's_mov_b32 {s(S_T0)}, {f32(128 ** -0.5)}')
        for vals in (v0, v1):
            for i in range(0, len(vals), 2):
                x, y = vals[i], vals[i + 1]
                k(f'v_cvt_pk_bf16_f32 {v(K2)}, {v(x)}, {v(y)}')
                k(f'v_lshlrev_b32 {v(x)}, 16, {v(K2)}')
                k(f'v_and_b32 {v(y)}, 0xffff0000, {v(K2)}')
                k(f'v_mul_f32 {v(x)}, {s(S_T0)}, {v(x)}')
                k(f'v_mul_f32 {v(y)}, {s(S_T0)}, {v(y)}')
                k(f'v_cvt_pk_bf16_f32 {v(K2)}, {v(x)}, {v(y)}')
                k(f'v_lshlrev_b32 {v(x)}, 16, {v(K2)}')
                k(f'v_and_b32 {v(y)}, 0xffff0000, {v(K2)}')
        k(f's_mov_b32 {s(S_C)}, {f32(LOG2E)}')
    M0, M1 = T0, T2
    k(f'v_max3_f32 {v(M0)}, {v(v0[0])}, {v(v0[1])}, {v(v0[2])}')
    k(f'v_max3_f32 {v(M1)}, {v(v1[0])}, {v(v1[1])}, {v(v1[2])}')
    k(f'v_max3_f32 {v(M0)}, {v(M0)}, {v(v0[3])}, {v(v0[4])}')
    k(f'v_max3_f32 {v(M1)}, {v(M1)}, {v(v1[3])}, {v(v1[4])}')
    k(f'v_max_f32 {v(M0)}, {v(M0)}, {v(v0[5])}')
    k(f'v_max3_f32 {v(M1)}, {v(M1)}, {v(v1[5])}, {v(v1[6])}')
    k(f'v_max3_f32 {v(M1)}, {v(M1)}, {v(v1[7])}, {v(v1[8])}')
    k(f'v_max_f32 {v(M1)}, {v(M1)}, {v(v1[9])}')

    def xl2(op):
        for sw in ('v_permlane16_swap_b32', 'v_permlane32_swap_b32'):
            k(f'v_mov_b32 {v(T1)}, {v(M0)}')
            k(f'v_mov_b32 {v(T3)}, {v(M1)}')
            k(f'{sw} {v(M0)}, {v(T1)}')
            k(f'{sw} {v(M1)}, {v(T3)}')
            k(f'{op} {v(M0)}, {v(M0)}, {v(T1)}')
            k(f'{op} {v(M1)}, {v(M1)}, {v(T3)}')
    xl2('v_max_f32')
    k(f'v_mul_f32 {v(M0)}, {s(S_C)}, {v(M0)}')
    k(f'v_mul_f32 {v(M1)}, {s(S_C)}, {v(M1)}')
    for vals, m in ((v0, M0), (v1, M1)):
        for x in vals:
            k(f'v_fma_f32 {v(x)}, {v(x)}, {s(S_C)}, -{v(m)}')
    for x in v0 + v1:
        k(f'v_exp_f32 {v(x)}, {v(x)}')
    for vals, m in ((v0, M0), (v1, M1)):
        k(f'v_add_f32 {v(m)}, {v(vals[0])}, {v(vals[1])}')
    for i in range(2, 10):
        if i < 6:
            k(f'v_add_f32 {v(M0)}, {v(M0)}, {v(v0[i])}')
        k(f'v_add_f32 {v(M1)}, {v(M1)}, {v(v1[i])}')
    xl2('v_add_f32')
    k(f'v_rcp_f32 {v(M0)}, {v(M0)}')
    k(f'v_rcp_f32 {v(M1)}, {v(M1)}')
    for vals, m in ((v0, M0), (v1, M1)):
        for x in vals:
            k(f'v_mul_f32 {v(x)}, {v(x)}, {v(m)}')
    for i in range(2):
        k(f'v_cvt_pk_bf16_f32 {v(PX0 + i)}, {v(v0[2 * i])}, {v(v0[2 * i + 1])}')
    k(f'v_cvt_pk_bf16_f32 {v(PM0)}, {v(SM0)}, {v(SM0 + 1)}')
    for i in range(4):
        k(f'v_cvt_pk_bf16_f32 {v(PX1 + i)}, {v(v1[2 * i])}, {v(v1[2 * i + 1])}')
    k(f'v_cvt_pk_bf16_f32 {v(PM1)}, {v(SM1)}, {v(SM1 + 1)}')
    vq.wait('v')
    PO = 32
    OP = 200
    for qt, (px, pm) in enumerate(((PX0, PM0), (PX1, PM1))):
        for et in range(8):
            k(f'v_mfma_f32_16x16x32_bf16 {v(PO + qt * 32 + et * 4, 4)}, {v(VF + 4 * et, 4)}, {v(px, 4)}, 0')
        for et in range(8):
            acc = v(PO + qt * 32 + et * 4, 4)
            k(f'v_mfma_f32_16x16x16_bf16 {acc}, {v(VMF + 2 * et, 2)}, {v(pm, 2)}, {acc}')
    for qt in range(2):
        for eb in range(4):
            o = OP + ((qt * 4 + eb) & 1) * 4
            acc = PO + qt * 32 + eb * 8
            for i in range(4):
                k(f'v_cvt_pk_bf16_f32 {v(o + i)}, {v(acc + 2 * i)}, {v(acc + 2 * i + 1)}')
            lq.issue(f'ds_write_b128 {v(V_OW)}, {v(o, 4)} offset:{qt * 8192 + eb * 1024}')
    lq.drain()
    k('s_barrier')
    outproj(k, lq, 8, WO, V_L16, 0, S_DST, V_ST, XF=96 - 64 + 64 + 64, ACC=32, OUT=96)
    k('s_waitcnt vmcnt(0)')
    vq.q = []
    set_flag(k, S_FO, VT)
    k('s_branch L_AO_LOOP')


def role_ffn(k):
    k.label('L_FFN')
    (S_J, S_RP, S_LDS, S_OFF, S_SO, S_SO2, S_B1, S_B2, S_L, S_B, S_SRC, S_DST, S_FO) = range(70, 83)
    k(f's_sub_u32 {s(S_J)}, {s(S_ROLE)}, {R_FFN}')
    k(f's_mul_i32 {s(S_RP)}, {s(S_J)}, 37')
    k(f's_lshr_b32 {s(S_RP)}, {s(S_RP)}, 9')
    k(f's_mul_i32 {s(S_T0)}, {s(S_RP)}, 14')
    k(f's_sub_u32 {s(S_J)}, {s(S_J)}, {s(S_T0)}')
    init_arrive(k)
    srd(k, S_W0, P_WG, 512 * 3584)
    srd(k, S_W1, P_WU, 512 * 3584)
    srd(k, S_W2, P_WD, 1792 * 1024)
    k(f's_lshl_b32 {s(S_LDS)}, {s(S_WAVE)}, 15')
    k(f's_lshl_b32 {s(S_SO)}, {s(S_J)}, 8')
    k(f's_lshl_b32 {s(S_T0)}, {s(S_WAVE)}, 6')
    k(f's_add_u32 {s(S_SO)}, {s(S_SO)}, {s(S_T0)}')
    k(f's_lshl_b32 {s(S_SO2)}, {s(S_J)}, 17')
    k(f's_lshl_b32 {s(S_T0)}, {s(S_WAVE)}, 8')
    k(f's_add_u32 {s(S_SO2)}, {s(S_SO2)}, {s(S_T0)}')
    V_TR = 8
    dense_tr_addr(k, V_TR, S_LDS)
    ld = Loader(k, 9, S_LDS, S_OFF)
    WG = lambda odd, kb: ('a', odd * 64 + kb * 4)
    WU = lambda odd, kb: ('a', 128 + odd * 64 + kb * 4)
    WD = lambda st, odd, kb: ('v', 128 + ((st * 2 + odd) * 4 + kb) * 4)
    pieces = []
    for srd_, fn in ((S_W0, WG), (S_W1, WU)):
        for q in range(4):
            pieces.append(dict(srd=srd_, soff=S_SO, ld=3584, row0=q * 128,
                               consume=dense_consume(k, V_TR, (lambda fn, q: lambda odd, kb: fn(odd, q * 4 + kb))(fn, q))))
    for st in range(4):
        pieces.append(dict(srd=S_W2, soff=S_SO2, ld=1024, row0=0, coff=st * 64,
                           consume=dense_consume(k, V_TR, (lambda st: lambda odd, kb: WD(st, odd, kb))(st))))
    ld.run(pieces)
    V_PB, V_PS, V_T0, V_TS, VT = 8, 9, 10, 11, 12
    V_ST, V_HW, V_HR = 15, 6, 7
    k(f'v_and_b32 v3, 31, {v(V_LANE)}')
    k('v_lshlrev_b32 v3, 2, v3')
    k(f'v_mov_b32 v4, {F_XN + 1 * 4096}')
    k(f'v_mov_b32 v5, {F_XN + 3 * 4096}')
    k(f'v_cndmask_b32 v4, v4, v5, {s(S_LO32, 2)}')
    k(f'v_add_u32 {v(V_PB)}, v3, v4')
    k(f'v_mov_b32 {v(V_PS)}, 128')
    k(f'v_mov_b32 {v(V_T0)}, 1')
    k(f'v_mov_b32 {v(V_TS)}, 0')
    k(f'v_and_b32 v3, 15, {v(V_LANE)}')
    k(f'v_lshrrev_b32 v4, 4, {v(V_LANE)}')
    k('v_lshlrev_b32 v3, 10, v3')
    k(f'v_lshl_add_u32 {v(V_ST)}, v4, 4, v3')
    L_H = 128 * KB
    k(f'v_add_u32 {v(V_HR)}, {L_H}, {v(V_L16)}')
    k(f's_lshl_b32 {s(S_T0)}, {s(S_WAVE)}, 10')
    k(f'v_add_u32 {v(V_HW)}, {s(S_T0)}, {v(V_HR)}')
    k(f's_mov_b32 {s(S_B1)}, {s(S_RP)}')
    k(f's_mov_b32 {s(S_B2)}, {s(S_RP)}')
    init_wait(k, VT, VT + 1)
    k('s_barrier')
    lq = Q(k, 'lgkmcnt', 15)
    X = [16, 24, 32]
    ACC = 48
    OUT = 112
    k.label('L_FFN_LOOP')
    pick(k, S_B1, S_B2, 3, V_PB, V_PS, V_T0, V_TS, VT, S_L, S_B, 150 * KB, 'L_END', 8)
    k(f's_lshl_b32 {s(S_SRC)}, {s(S_L)}, 22')
    k(f's_lshl_b32 {s(S_T0)}, {s(S_B)}, 16')
    k(f's_add_u32 {s(S_SRC)}, {s(S_SRC)}, {s(S_T0)}')
    k(f's_add_u32 {s(S_SRC)}, {s(S_SRC)}, {XN + 2 * MB}')
    dma_xn_block(k, S_SRC, 0, S_T0)
    k(f's_lshl_b32 {s(S_DST)}, {s(S_J)}, 21')
    k(f's_lshl_b32 {s(S_T0)}, {s(S_B)}, 16')
    k(f's_add_u32 {s(S_DST)}, {s(S_DST)}, {s(S_T0)}')
    k(f's_lshl_b32 {s(S_T0)}, {s(S_WAVE)}, 8')
    k(f's_add_u32 {s(S_DST)}, {s(S_DST)}, {s(S_T0)}')
    k(f's_add_u32 {s(S_DST)}, {s(S_DST)}, {PF}')
    k(f's_lshl_b32 {s(S_FO)}, {s(S_L)}, 13')
    k(f's_lshl_b32 {s(S_T0)}, {s(S_B)}, 8')
    k(f's_add_u32 {s(S_FO)}, {s(S_FO)}, {s(S_T0)}')
    k(f's_lshl_b32 {s(S_T0)}, {s(S_J)}, 4')
    k(f's_add_u32 {s(S_FO)}, {s(S_FO)}, {s(S_T0)}')
    k(f's_lshl_b32 {s(S_T0)}, {s(S_WAVE)}, 2')
    k(f's_add_u32 {s(S_FO)}, {s(S_FO)}, {s(S_T0)}')
    k(f's_add_u32 {s(S_FO)}, {s(S_FO)}, {F_FF}')
    k('s_waitcnt vmcnt(0)')
    k('s_barrier')

    def rd(pr, kb):
        for t in range(2):
            lq.issue(f'ds_read_b128 {v(X[kb % 3] + 4 * t, 4)}, {v(V_L16)} offset:{((2 * pr + t) * 16 + kb) * 1024}', ('x', pr, kb))
    for pr in range(2):
        rd(pr, 0)
        rd(pr, 1)
        for kb in range(16):
            if kb + 2 < 16:
                rd(pr, kb + 2)
            lq.wait(('x', pr, kb))
            xs = X[kb % 3]
            for t in range(2):
                for m, fn in enumerate((WG, WU)):
                    for odd in range(2):
                        acc = ACC + t * 16 + m * 8 + odd * 4
                        c = '0' if kb == 0 else v(acc, 4)
                        k(f'v_mfma_f32_16x16x32_bf16 {v(acc, 4)}, {R(*fn(odd, kb), 4)}, {v(xs + 4 * t, 4)}, {c}')
        for t in range(2):
            g_, u_ = ACC + t * 16, ACC + t * 16 + 8
            for i in range(8):
                k(f'v_max_f32 {v(g_ + i)}, 0, {v(g_ + i)}')
            for i in range(8):
                k(f'v_mul_f32 {v(g_ + i)}, {v(g_ + i)}, {v(u_ + i)}')
            for i in range(4):
                k(f'v_cvt_pk_bf16_f32 {v(OUT + 4 * t + i)}, {v(g_ + 2 * i)}, {v(g_ + 2 * i + 1)}')
            lq.issue(f'ds_write_b128 {v(V_HW)}, {v(OUT + 4 * t, 4)} offset:{(2 * pr + t) * 4096}')
    lq.drain()
    k('s_barrier')
    outproj(k, lq, 4, WD, V_HR, 0, S_DST, V_ST, XF=16, ACC=48, OUT=112)
    k('s_waitcnt vmcnt(0)')
    set_flag(k, S_FO, VT)
    k('s_branch L_FFN_LOOP')
```

```python
import sys
from asmlib import Asm, v, a, s

NAME = 'interleave_layers__memory_aug_recurrent_mem_tr__glu_gated_reglu__prompt'
KB = 1024
MB = 1024 * 1024

F_XN = 0x0000
F_KV = 0x4000
F_Q = 0xC000
F_CH = 0x14000
F_AO = 0x16000
F_FF = 0x1A000
FLAGS_BYTES = 0x20000
PART = 1 * MB
MEM = 2 * MB
XN = 4 * MB
XR = 12 * MB
KM = 20 * MB
VM = 28 * MB
QB = 36 * MB
KBUF = 68 * MB
VBUF = 100 * MB
PA = 132 * MB
PF = 164 * MB
WS_BYTES = 268435456
LDS_BYTES = 163840

N_QKV, N_AO, N_FFN, N_RED = 64, 48, 42, 32
R_CH = 0
R_QKV = 64
R_AO = R_QKV + N_QKV
R_FFN = R_AO + N_AO
R_RED = R_FFN + N_FFN
R_END = R_RED + N_RED
XCC_A, XCC_B = 0, 1
SPIN_MAX = 1 << 17

P_X, P_MEM0, P_WQ, P_WK, P_WV, P_WO, P_SEG, P_BX, P_WG, P_WU, P_WD, P_OUT, P_DBG, P_WS = [4 + 2 * i for i in range(14)]
S_WS = 32
S_DBG = 36
S_W0 = 40
S_W1 = 44
S_W2 = 48
S_W3 = 52
S_WAVE = 56
S_ROLE = 57
S_XCC = 58
S_T0, S_T1, S_T2, S_T3 = 60, 61, 62, 63
S_SPIN = 64
S_LO32 = 66

V_TID, V_LANE, V_L16 = 0, 1, 2

MIMIC = '--mimic' in sys.argv
TIMING = '--timing' in sys.argv
ENABLE = dict(red=True, qkv=True, chain=True, ao=True, ffn=True)


def srd(k, dst, ptr, nbytes):
    k(f's_mov_b32 {s(dst)}, {s(ptr)}')
    k(f's_and_b32 {s(dst + 1)}, {s(ptr + 1)}, 0xffff')
    k(f's_mov_b32 {s(dst + 2)}, {nbytes}')
    k(f's_mov_b32 {s(dst + 3)}, 0x20000')


def spin_check(k, code):
    k(f's_add_u32 {s(S_SPIN)}, {s(S_SPIN)}, 1')
    k(f's_cmp_lt_u32 {s(S_SPIN)}, {SPIN_MAX}')
    ok = k.newlabel('SPOK')
    k(f's_cbranch_scc1 {ok}')
    k(f's_mov_b32 {s(S_T3)}, {code}')
    k('s_branch L_ABORT')
    k.label(ok)


def prologue(k):
    k(f'{NAME}_kernel:')
    k('s_cmp_ge_u32 s2, 256')
    k('s_cbranch_scc1 L_END')
    k('s_load_dwordx16 s[4:19], s[0:1], 0')
    k('s_load_dwordx8 s[20:27], s[0:1], 64')
    k('s_load_dwordx4 s[28:31], s[0:1], 96')
    k(f'v_and_b32 {v(V_LANE)}, 63, v0')
    k(f'v_lshrrev_b32 v3, 6, v0')
    k(f'v_lshlrev_b32 {v(V_L16)}, 4, {v(V_LANE)}')
    k(f'v_readfirstlane_b32 {s(S_WAVE)}, v3')
    k(f's_getreg_b32 {s(S_XCC)}, hwreg(HW_REG_XCC_ID)')
    k(f's_and_b32 {s(S_XCC)}, {s(S_XCC)}, 15')
    k(f's_mov_b32 {s(S_SPIN)}, 0')
    k(f's_mov_b32 {s(S_LO32)}, -1')
    k(f's_mov_b32 {s(S_LO32 + 1)}, 0')
    k('s_waitcnt lgkmcnt(0)')
    srd(k, S_WS, P_WS, WS_BYTES)
    srd(k, S_DBG, P_DBG, 256)
    k(f's_cmp_lg_u32 {s(S_WAVE)}, 0')
    k('s_cbranch_scc1 L_ROLE_WAIT')
    k('v_mov_b32 v4, 0')
    k('v_mov_b32 v5, 0')
    k(f'v_lshlrev_b32 v3, 3, {v(V_LANE)}')
    k(f's_lshl_b32 {s(S_T0)}, s2, 9')
    k(f'buffer_store_dwordx2 v[4:5], v3, {s(S_WS, 4)}, {s(S_T0)} offen sc1')
    k('s_mov_b64 exec, 1')

    def try_pool(off, cap, base, nxt):
        k('v_mov_b32 v3, 1')
        k(f'v_mov_b32 v6, {off}')
        k(f'buffer_atomic_add v3, v6, {s(S_DBG, 4)}, 0 offen sc0')
        k('s_waitcnt vmcnt(0)')
        k(f'v_readfirstlane_b32 {s(S_T0)}, v3')
        k(f's_cmp_ge_u32 {s(S_T0)}, {cap}')
        k(f's_cbranch_scc1 {nxt}')
        k(f's_add_u32 {s(S_ROLE)}, {s(S_T0)}, {base}')
        k('s_branch L_ROLE_GOT')

    k(f's_cmp_lg_u32 {s(S_XCC)}, {XCC_A}')
    k('s_cbranch_scc1 L_TK1')
    try_pool(0, 32, 0, 'L_TK2')
    k.label('L_TK1')
    k(f's_cmp_lg_u32 {s(S_XCC)}, {XCC_B}')
    k('s_cbranch_scc1 L_TK2')
    try_pool(4, 32, 32, 'L_TK2')
    k.label('L_TK2')
    try_pool(8, 192, 64, 'L_TK3')
    k.label('L_TK3')
    try_pool(0, 32, 0, 'L_TK4')
    k.label('L_TK4')
    try_pool(4, 32, 32, 'L_TK5')
    k.label('L_TK5')
    k(f's_mov_b32 {s(S_ROLE)}, 255')
    k.label('L_ROLE_GOT')
    k(f'v_mov_b32 v3, {s(S_ROLE)}')
    k('v_mov_b32 v6, 0')
    k('ds_write_b32 v6, v3')
    k('s_mov_b64 exec, -1')
    k('s_waitcnt lgkmcnt(0)')
    k.label('L_ROLE_WAIT')
    k('s_barrier')
    k('v_mov_b32 v6, 0')
    k('ds_read_b32 v3, v6')
    k('s_waitcnt lgkmcnt(0)')
    k(f'v_readfirstlane_b32 {s(S_ROLE)}, v3')
    k('s_barrier')
    k(f's_cmp_lt_u32 {s(S_ROLE)}, {R_QKV}')
    k('s_cbranch_scc1 L_CHAIN')
    k(f's_cmp_lt_u32 {s(S_ROLE)}, {R_AO}')
    k('s_cbranch_scc1 L_QKV')
    k(f's_cmp_lt_u32 {s(S_ROLE)}, {R_FFN}')
    k('s_cbranch_scc1 L_AO')
    k(f's_cmp_lt_u32 {s(S_ROLE)}, {R_RED}')
    k('s_cbranch_scc1 L_FFN')
    k(f's_cmp_lt_u32 {s(S_ROLE)}, {R_END}')
    k('s_cbranch_scc1 L_RED')
    init_arrive(k)
    k('s_branch L_END')


def init_arrive(k):
    k('s_waitcnt vmcnt(0)')
    k('s_barrier')
    lab = k.newlabel('IA')
    k(f's_cmp_lg_u32 {s(S_WAVE)}, 0')
    k(f's_cbranch_scc1 {lab}')
    k('s_mov_b64 exec, 1')
    k('v_mov_b32 v3, 1')
    k('v_mov_b32 v6, 12')
    k(f'buffer_atomic_add v3, v6, {s(S_DBG, 4)}, 0 offen')
    k('s_mov_b64 exec, -1')
    k.label(lab)


def init_wait(k, vt0, vt1):
    lp = k.newlabel('IW')
    k(f'v_mov_b32 {v(vt1)}, 12')
    k.label(lp)
    k(f'buffer_load_dword {v(vt0)}, {v(vt1)}, {s(S_DBG, 4)}, 0 offen sc1')
    k('s_waitcnt vmcnt(0)')
    k(f'v_readfirstlane_b32 {s(S_T0)}, {v(vt0)}')
    done = k.newlabel('IWD')
    k(f's_cmp_ge_u32 {s(S_T0)}, 256')
    k(f's_cbranch_scc1 {done}')
    spin_check(k, 1)
    k('s_sleep 8')
    k(f's_branch {lp}')
    k.label(done)
    k(f's_mov_b32 {s(S_SPIN)}, 0')


def epilogue(k):
    k.label('L_ABORT')
    k('s_mov_b64 exec, 1')
    k(f's_lshl_b32 {s(S_T0)}, {s(S_ROLE)}, 8')
    k(f's_or_b32 {s(S_T0)}, {s(S_T0)}, {s(S_T3)}')
    k(f'v_mov_b32 v3, {s(S_T0)}')
    k('v_mov_b32 v6, 60')
    k(f'buffer_store_dword v3, v6, {s(S_DBG, 4)}, 0 offen sc1')
    k('s_waitcnt vmcnt(0)')
    k.label('L_END')
    k('s_endpgm')


class Loader:
    def __init__(self, k, vtmp, s_lds, s_off):
        self.k = k
        self.vt = vtmp
        self.s_lds = s_lds
        self.s_off = s_off
        self.voff = {}

    def voffset(self, ld):
        k = self.k
        if ld not in self.voff:
            r = self.vt + len(self.voff)
            self.voff[ld] = r
            k(f'v_lshrrev_b32 {v(r)}, 2, {v(V_LANE)}')
            k(f's_mov_b32 {s(self.s_off)}, {ld}')
            k(f'v_mul_lo_u32 {v(r)}, {v(r)}, {s(self.s_off)}')
            k(f'v_and_b32 v3, 3, {v(V_LANE)}')
            k(f'v_lshl_add_u32 {v(r)}, v3, 4, {v(r)}')
        return self.voff[ld]

    def issue(self, p, slot):
        k = self.k
        vo = self.voffset(p['ld'])
        k(f's_add_u32 m0, {s(self.s_lds)}, {slot * 8192}')
        k(f's_add_u32 {s(self.s_off)}, {s(p["soff"])}, {p["row0"] * p["ld"] + p.get("coff", 0)}')
        for i in range(8):
            k(f'buffer_load_dwordx4 {v(vo)}, {s(p["srd"], 4)}, {s(self.s_off)} offen lds')
            if i < 7:
                k('s_add_u32 m0, m0, 1024')
                k(f's_add_u32 {s(self.s_off)}, {s(self.s_off)}, {16 * p["ld"]}')

    def run(self, pieces, group=1):
        k = self.k
        for p in pieces:
            self.voffset(p['ld'])
        n = len(pieces)
        for i in range(min(4, n)):
            self.issue(pieces[i], i)
        i = 0
        while i < n:
            g = pieces[i].get('group', 1)
            issued = min(n, i + 4)
            out = (issued - (i + g)) * 8
            k(f's_waitcnt vmcnt({out})')
            pieces[i]['consume'](i % 4)
            k('s_waitcnt lgkmcnt(0)')
            for j in range(i + 4, min(n, i + 4 + g)):
                self.issue(pieces[j], j % 4)
            i += g


def dense_tr_addr(k, vdst, s_lds):
    k(f'v_lshrrev_b32 v3, 4, {v(V_LANE)}')
    k(f'v_bfe_u32 v4, {v(V_LANE)}, 2, 2')
    k('v_lshl_add_u32 v3, v3, 3, v4')
    k('v_lshlrev_b32 v3, 6, v3')
    k(f'v_and_b32 v4, 3, {v(V_LANE)}')
    k('v_lshl_add_u32 v3, v4, 4, v3')
    k(f'v_add_u32 {v(vdst)}, {s(s_lds)}, v3')


def dense_consume(k, vaddr, regfn):
    def f(slot):
        for kb in range(4):
            for odd in range(2):
                kind, idx = regfn(odd, kb)
                for hf in range(2):
                    off = slot * 8192 + (kb * 32 + hf * 4) * 64 + odd * 8
                    dst = (v if kind == 'v' else a)(idx + 2 * hf, 2)
                    k(f'ds_read_b64_tr_b16 {dst}, {v(vaddr)} offset:{off}')
    return f


def R(kind, idx, n):
    return (v if kind == 'v' else a)(idx, n)


def pick(k, s_b1, s_b2, step, v_base, v_stride, v_thr0, v_thrs, vt, s_l, s_b, lds_word, done_label, code):
    lp = k.newlabel('PK')
    got = k.newlabel('PKG')
    wait = k.newlabel('PKW')
    c1 = k.newlabel('PK1')
    k(f's_min_u32 {s(S_T0)}, {s(s_b1)}, {s(s_b2)}')
    k(f's_cmp_ge_u32 {s(S_T0)}, 32')
    k(f's_cbranch_scc1 {done_label}')
    k(f's_cmp_lg_u32 {s(S_WAVE)}, 0')
    k(f's_cbranch_scc1 {wait}')
    k(f's_min_u32 {s(S_T0)}, {s(s_b1)}, 31')
    k(f's_min_u32 {s(S_T1)}, {s(s_b2)}, 31')
    k(f'v_mov_b32 {v(vt)}, {s(S_T0)}')
    k(f'v_mov_b32 {v(vt + 1)}, {s(S_T1)}')
    k(f'v_cndmask_b32 {v(vt)}, {v(vt)}, {v(vt + 1)}, {s(S_LO32, 2)}')
    k(f'v_mad_u32_u24 {v(vt + 1)}, {v(vt)}, {v(v_stride)}, {v(v_base)}')
    k(f'v_mad_u32_u24 {v(vt + 2)}, {v(vt)}, {v(v_thrs)}, {v(v_thr0)}')
    k.label(lp)
    k(f'buffer_load_dword {v(vt)}, {v(vt + 1)}, {s(S_WS, 4)}, 0 offen sc1')
    k('s_waitcnt vmcnt(0)')
    k(f'v_cmp_ge_u32 vcc, {v(vt)}, {v(vt + 2)}')
    k(f's_cmp_ge_u32 {s(s_b2)}, 32')
    k(f's_cbranch_scc1 {c1}')
    k(f's_add_u32 {s(S_T0)}, {s(s_b2)}, 64')
    k('s_cmp_eq_u32 vcc_lo, -1')
    k(f's_cbranch_scc1 {got}')
    k.label(c1)
    lp2 = k.newlabel('PK2')
    k(f's_cmp_ge_u32 {s(s_b1)}, 32')
    k(f's_cbranch_scc1 {lp2}')
    k(f's_mov_b32 {s(S_T0)}, {s(s_b1)}')
    k('s_cmp_eq_u32 vcc_hi, -1')
    k(f's_cbranch_scc1 {got}')
    k.label(lp2)
    spin_check(k, code)
    k('s_sleep 2')
    k(f's_branch {lp}')
    k.label(got)
    k(f's_mov_b32 {s(S_SPIN)}, 0')
    k(f'v_mov_b32 {v(vt)}, {s(S_T0)}')
    k(f'v_mov_b32 {v(vt + 1)}, {lds_word}')
    k(f'ds_write_b32 {v(vt + 1)}, {v(vt)}')
    k('s_waitcnt lgkmcnt(0)')
    k.label(wait)
    k('s_barrier')
    k(f'v_mov_b32 {v(vt + 1)}, {lds_word}')
    k(f'ds_read_b32 {v(vt)}, {v(vt + 1)}')
    k('s_waitcnt lgkmcnt(0)')
    k(f'v_readfirstlane_b32 {s(S_T0)}, {v(vt)}')
    k(f's_lshr_b32 {s(s_l)}, {s(S_T0)}, 6')
    k(f's_and_b32 {s(s_b)}, {s(S_T0)}, 63')
    k(f's_cmp_eq_u32 {s(s_l)}, 0')
    k(f's_cselect_b32 {s(S_T0)}, {step}, 0')
    k(f's_cselect_b32 {s(S_T1)}, 0, {step}')
    k(f's_add_u32 {s(s_b1)}, {s(s_b1)}, {s(S_T0)}')
    k(f's_add_u32 {s(s_b2)}, {s(s_b2)}, {s(S_T1)}')


def set_flag(k, s_off, vt, val=1, val_sgpr=None):
    k('s_mov_b64 exec, 1')
    if val_sgpr is None:
        k(f'v_mov_b32 {v(vt)}, {val}')
    else:
        k(f'v_mov_b32 {v(vt)}, {s(val_sgpr)}')
    k(f'v_mov_b32 {v(vt + 1)}, 0')
    k(f'buffer_store_dword {v(vt)}, {v(vt + 1)}, {s(S_WS, 4)}, {s(s_off)} offen sc1')
    k('s_mov_b64 exec, -1')


def dma_xn_block(k, s_src, lds_base, s_tmp):
    k(f's_lshl_b32 {s(s_tmp)}, {s(S_WAVE)}, 14')
    k(f's_add_u32 m0, {s(s_tmp)}, {lds_base}')
    k(f's_add_u32 {s(s_tmp)}, {s(s_tmp)}, {s(s_src)}')
    for i in range(16):
        if i and i % 4 == 0:
            k('s_add_u32 m0, m0, 4096')
            k(f's_add_u32 {s(s_tmp)}, {s(s_tmp)}, 4096')
        k(f'buffer_load_dwordx4 {v(V_L16)}, {s(S_WS, 4)}, {s(s_tmp)} offen offset:{(i % 4) * 1024} sc1 lds')


def role_red(k):
    k.label('L_RED')
    S_I, S_ST, S_B, S_ROW, S_U, S_NP, S_PB, S_XO, S_XNEW, S_FL, S_CNT = range(70, 81)
    S_XSRD, S_OSRD = S_W0, S_W1
    srd(k, S_XSRD, P_X, 2 * MB)
    srd(k, S_OSRD, P_OUT, 2 * MB)
    k(f's_sub_u32 {s(S_I)}, {s(S_ROLE)}, {R_RED}')
    k(f's_lshr_b32 {s(S_ST)}, {s(S_I)}, 3')
    k(f's_and_b32 {s(S_I)}, {s(S_I)}, 7')
    init_arrive(k)
    VA = 16
    VX = 32
    VP = 64
    VT = 8
    V_SC = 40
    V_O = 44
    k(f'v_lshrrev_b32 v3, 2, {v(V_LANE)}')
    k('v_lshlrev_b32 v3, 10, v3')
    k(f'v_and_b32 v4, 3, {v(V_LANE)}')
    k(f'v_lshl_add_u32 {v(V_SC)}, v4, 8, v3')
    k(f'v_lshlrev_b32 v41, 2, {v(V_LANE)}')

    def finish_rows(u_is_sgpr, write_x, write_xn, to_out):
        for r in range(2):
            A = VA + 8 * r
            O = V_O + 4 * r
            for j in range(4):
                k(f'v_cvt_pk_bf16_f32 {v(O + j)}, {v(A + 2 * j)}, {v(A + 2 * j + 1)}')
            if to_out:
                k(f's_lshl_b32 {s(S_T0)}, {s(S_ROW)}, 10')
                k(f'buffer_store_dwordx4 {v(O, 4)}, {v(V_L16)}, {s(S_OSRD, 4)}, {s(S_T0)} offen offset:{r * 1024}')
            elif write_x:
                k(f's_lshl_b32 {s(S_T0)}, {s(S_ROW)}, 10')
                k(f's_add_u32 {s(S_T0)}, {s(S_T0)}, {s(S_XNEW)}')
                k(f'buffer_store_dwordx4 {v(O, 4)}, {v(V_L16)}, {s(S_WS, 4)}, {s(S_T0)} offen offset:{r * 1024} sc1')
        if not write_xn:
            return

        def wave_sum(r0, r1):
            for sh in ('row_shr:1', 'row_shr:2', 'row_shr:4', 'row_shr:8'):
                for r in (r0, r1):
                    k(f'v_add_f32_dpp {v(r)}, {v(r)}, {v(r)} {sh} row_mask:0xf bank_mask:0xf bound_ctrl:0')
            for r in (r0, r1):
                k(f'v_add_f32_dpp {v(r)}, {v(r)}, {v(r)} row_bcast:15 row_mask:0xa bank_mask:0xf')
            for r in (r0, r1):
                k(f'v_add_f32_dpp {v(r)}, {v(r)}, {v(r)} row_bcast:31 row_mask:0xc bank_mask:0xf')
        T = [VT, VT + 1]
        for r in range(2):
            A = VA + 8 * r
            k(f'v_add_f32 {v(T[r])}, {v(A)}, {v(A + 1)}')
            for j in range(2, 8):
                k(f'v_add_f32 {v(T[r])}, {v(T[r])}, {v(A + j)}')
        wave_sum(*T)
        SM = [82, 83]
        SV = [84, 85]
        for r in range(2):
            k(f'v_readlane_b32 {s(SM[r])}, {v(T[r])}, 63')
        M = [VT + 2, VT + 3]
        for r in range(2):
            k(f'v_mov_b32 {v(M[r])}, {s(SM[r])}')
            k(f'v_mul_f32 {v(M[r])}, 0x3b000000, {v(M[r])}')
        D = 52
        for r in range(2):
            A = VA + 8 * r
            for j in range(8):
                k(f'v_sub_f32 {v(D + j)}, {v(A + j)}, {v(M[r])}')
            k(f'v_mul_f32 {v(T[r])}, {v(D)}, {v(D)}')
            for j in range(1, 8):
                k(f'v_fmac_f32 {v(T[r])}, {v(D + j)}, {v(D + j)}')
        wave_sum(*T)
        for r in range(2):
            k(f'v_readlane_b32 {s(SV[r])}, {v(T[r])}, 63')
        for r in range(2):
            t = T[r]
            k(f'v_mov_b32 {v(t)}, {s(SV[r])}')
            k(f'v_mul_f32 {v(t)}, 0x3b000000, {v(t)}')
            k(f'v_cvt_pk_bf16_f32 {v(t)}, {v(t)}, {v(t)}')
            k(f'v_and_b32 {v(t)}, 0xffff0000, {v(t)}')
            k(f'v_add_f32 {v(t)}, 0x3727c5ac, {v(t)}')
            k(f'v_cvt_pk_bf16_f32 {v(t)}, {v(t)}, {v(t)}')
            k(f'v_and_b32 {v(t)}, 0xffff0000, {v(t)}')
            k(f'v_sqrt_f32 {v(t)}, {v(t)}')
            k(f'v_cvt_pk_bf16_f32 {v(t)}, {v(t)}, {v(t)}')
            k(f'v_and_b32 {v(t)}, 0xffff0000, {v(t)}')
            k(f'v_rcp_f32 {v(t)}, {v(t)}')
            k(f'v_cvt_pk_bf16_f32 {v(M[r])}, {v(M[r])}, {v(M[r])}')
            k(f'v_and_b32 {v(M[r])}, 0xffff0000, {v(M[r])}')
        for r in range(2):
            A = VA + 8 * r
            O = 60 + 0
            XO = V_O + 8 + 4 * r
            XO = 192 + 4 * r
            for j in range(8):
                k(f'v_sub_f32 {v(D + j)}, {v(A + j)}, {v(M[r])}')
            for j in range(4):
                k(f'v_cvt_pk_bf16_f32 {v(O + j)}, {v(D + 2 * j)}, {v(D + 2 * j + 1)}')
            for j in range(4):
                k(f'v_lshlrev_b32 {v(D + 2 * j)}, 16, {v(O + j)}')
                k(f'v_and_b32 {v(D + 2 * j + 1)}, 0xffff0000, {v(O + j)}')
            for j in range(8):
                k(f'v_mul_f32 {v(D + j)}, {v(D + j)}, {v(T[r])}')
            for j in range(4):
                k(f'v_cvt_pk_bf16_f32 {v(XO + j)}, {v(D + 2 * j)}, {v(D + 2 * j + 1)}')
            k(f's_add_u32 {s(S_T1)}, {s(S_ROW)}, {r}')
            k(f's_lshr_b32 {s(S_T0)}, {s(S_T1)}, 4')
            k(f's_lshl_b32 {s(S_T0)}, {s(S_T0)}, 14')
            k(f's_and_b32 {s(S_T1)}, {s(S_T1)}, 15')
            k(f's_lshl_b32 {s(S_T1)}, {s(S_T1)}, 4')
            k(f's_add_u32 {s(S_T0)}, {s(S_T0)}, {s(S_T1)}')
            k(f's_lshl_b32 {s(S_T1)}, {s(S_U)}, 21')
            k(f's_add_u32 {s(S_T0)}, {s(S_T0)}, {s(S_T1)}')
            k(f's_add_u32 {s(S_T0)}, {s(S_T0)}, {XN}')
            k(f'buffer_store_dwordx4 {v(XO, 4)}, {v(V_SC)}, {s(S_WS, 4)}, {s(S_T0)} offen sc1')

    def signal_xn():
        k('s_waitcnt vmcnt(0)')
        k(f's_lshl_b32 {s(S_T0)}, {s(S_U)}, 12')
        k(f's_lshl_b32 {s(S_T1)}, {s(S_B)}, 7')
        k(f's_add_u32 {s(S_T0)}, {s(S_T0)}, {s(S_T1)}')
        k(f's_lshl_b32 {s(S_T1)}, {s(S_I)}, 4')
        k(f's_add_u32 {s(S_T0)}, {s(S_T0)}, {s(S_T1)}')
        k(f's_lshl_b32 {s(S_T1)}, {s(S_WAVE)}, 2')
        k(f's_add_u32 {s(S_T0)}, {s(S_T0)}, {s(S_T1)}')
        if F_XN:
            k(f's_add_u32 {s(S_T0)}, {s(S_T0)}, {F_XN}')
        set_flag(k, S_T0, VT)

    def calc_row():
        k(f's_lshl_b32 {s(S_ROW)}, {s(S_B)}, 6')
        k(f's_lshl_b32 {s(S_T0)}, {s(S_I)}, 3')
        k(f's_add_u32 {s(S_ROW)}, {s(S_ROW)}, {s(S_T0)}')
        k(f's_lshl_b32 {s(S_T0)}, {s(S_WAVE)}, 1')
        k(f's_add_u32 {s(S_ROW)}, {s(S_ROW)}, {s(S_T0)}')

    def unpack(dst, src):
        for j in range(4):
            k(f'v_lshlrev_b32 {v(dst + 2 * j)}, 16, {v(src + j)}')
            k(f'v_and_b32 {v(dst + 2 * j + 1)}, 0xffff0000, {v(src + j)}')

    k(f's_mov_b32 {s(S_U)}, 0')
    k(f's_mov_b32 {s(S_B)}, {s(S_ST)}')
    k(f's_mov_b32 {s(S_CNT)}, 0')
    k.label('L_RED0')
    calc_row()
    k(f's_lshl_b32 {s(S_T0)}, {s(S_ROW)}, 10')
    for r in range(2):
        k(f'buffer_load_dwordx4 {v(VX + 4 * r, 4)}, {v(V_L16)}, {s(S_XSRD, 4)}, {s(S_T0)} offen offset:{r * 1024}')
    k('s_waitcnt vmcnt(0)')
    for r in range(2):
        unpack(VA + 8 * r, VX + 4 * r)
    finish_rows(True, False, True, False)
    k(f's_cmp_lg_u32 {s(S_CNT)}, 0')
    k('s_cbranch_scc1 L_RED0_S')
    init_wait(k, VT, VT + 1)
    k(f's_mov_b32 {s(S_CNT)}, 1')
    k.label('L_RED0_S')
    signal_xn()
    k(f's_add_u32 {s(S_B)}, {s(S_B)}, 4')
    k(f's_cmp_lt_u32 {s(S_B)}, 32')
    k('s_cbranch_scc1 L_RED0')

    for st in range(4):
        u = st + 1
        nxt = f'L_RED_ST{st + 1}'
        k.label(f'L_RED_ST{st}')
        if st < 3:
            k(f's_cmp_lg_u32 {s(S_ST)}, {st}')
            k(f's_cbranch_scc1 {nxt}')
        is_ao = st % 2 == 0
        if not ENABLE['ao' if is_ao else 'ffn']:
            k('s_branch L_END')
            continue
        npart = 16 if is_ao else 14
        pbase = PA if is_ao else PF
        fl = (F_AO if is_ao else F_FF) + (st // 2) * 8192
        k(f's_mov_b32 {s(S_U)}, {u}')
        k(f's_mov_b32 {s(S_B)}, 0')
        k(f's_mov_b32 {s(S_XNEW)}, {XR + st * 2 * MB}')
        k(f'v_cmp_gt_u32 vcc, {4 * npart}, {v(V_LANE)}')
        k(f'v_cndmask_b32 v42, 0, v41, vcc')
        lp = f'L_RED_LP{st}'
        k.label(lp)
        calc_row()
        k(f's_lshl_b32 {s(S_T0)}, {s(S_ROW)}, 10')
        pl = k.newlabel('RPL')
        pd = k.newlabel('RPD')
        k(f's_lshl_b32 {s(S_FL)}, {s(S_B)}, 8')
        k(f's_add_u32 {s(S_FL)}, {s(S_FL)}, {fl}')
        k.label(pl)
        k(f'buffer_load_dword {v(VT)}, v42, {s(S_WS, 4)}, {s(S_FL)} offen sc1')
        k('s_waitcnt vmcnt(0)')
        k(f'v_cmp_ne_u32 vcc, 0, {v(VT)}')
        k('s_cmp_eq_u64 vcc, exec')
        k(f's_cbranch_scc1 {pd}')
        spin_check(k, 2)
        k('s_sleep 1')
        k(f's_branch {pl}')
        k.label(pd)
        k(f's_mov_b32 {s(S_SPIN)}, 0')
        k(f's_lshl_b32 {s(S_T0)}, {s(S_ROW)}, 10')
        for r in range(2):
            if st == 0:
                k(f'buffer_load_dwordx4 {v(VX + 4 * r, 4)}, {v(V_L16)}, {s(S_XSRD, 4)}, {s(S_T0)} offen offset:{r * 1024}')
            else:
                k(f's_add_u32 {s(S_T1)}, {s(S_T0)}, {XR + (st - 1) * 2 * MB}')
                k(f'buffer_load_dwordx4 {v(VX + 4 * r, 4)}, {v(V_L16)}, {s(S_WS, 4)}, {s(S_T1)} offen offset:{r * 1024} sc1')
        k(f's_add_u32 {s(S_T1)}, {s(S_T0)}, {pbase}')
        for p in range(npart):
            for r in range(2):
                k(f'buffer_load_dwordx4 {v(VP + (p * 2 + r) * 4, 4)}, {v(V_L16)}, {s(S_WS, 4)}, {s(S_T1)} offen offset:{r * 1024} sc1')
            if p < npart - 1:
                k(f's_add_u32 {s(S_T1)}, {s(S_T1)}, {2 * MB}')
        D = 52
        for p in range(npart):
            k(f's_waitcnt vmcnt({2 * (npart - 1 - p)})')
            for r in range(2):
                src = VP + (p * 2 + r) * 4
                A = VA + 8 * r
                if p == 0:
                    unpack(A, src)
                else:
                    unpack(D, src)
                    for j in range(8):
                        k(f'v_add_f32 {v(A + j)}, {v(A + j)}, {v(D + j)}')
        for r in range(2):
            A = VA + 8 * r
            O = 60
            for j in range(4):
                k(f'v_cvt_pk_bf16_f32 {v(O + j)}, {v(A + 2 * j)}, {v(A + 2 * j + 1)}')
            unpack(A, O)
            unpack(D, VX + 4 * r)
            for j in range(8):
                k(f'v_add_f32 {v(A + j)}, {v(A + j)}, {v(D + j)}')
            for j in range(4):
                k(f'v_cvt_pk_bf16_f32 {v(O + j)}, {v(A + 2 * j)}, {v(A + 2 * j + 1)}')
            unpack(A, O)
        last = st == 3
        finish_rows(True, not last, not last, last)
        if not last:
            signal_xn()
        k(f's_add_u32 {s(S_B)}, {s(S_B)}, 1')
        k(f's_cmp_lt_u32 {s(S_B)}, 32')
        k(f's_cbranch_scc1 {lp}')
        k('s_branch L_END')


def role_qkv(k):
    k.label('L_QKV')
    if not ENABLE['qkv']:
        init_arrive(k)
        k('s_branch L_END')
        return
    S_H, S_RP, S_LDS, S_OFF, S_SO, S_B1, S_B2, S_L, S_B, S_SRC, S_KO, S_VO, S_QO, S_FO = range(70, 84)
    k(f's_sub_u32 {s(S_H)}, {s(S_ROLE)}, {R_QKV}')
    k(f's_lshr_b32 {s(S_RP)}, {s(S_H)}, 5')
    k(f's_and_b32 {s(S_H)}, {s(S_H)}, 31')
    init_arrive(k)
    srd(k, S_W0, P_WK, 4 * MB)
    srd(k, S_W1, P_WV, 4 * MB)
    srd(k, S_W2, P_WQ, 4 * MB)
    k(f's_lshl_b32 {s(S_LDS)}, {s(S_WAVE)}, 15')
    k(f's_lshl_b32 {s(S_SO)}, {s(S_H)}, 8')
    k(f's_lshl_b32 {s(S_T0)}, {s(S_WAVE)}, 6')
    k(f's_add_u32 {s(S_SO)}, {s(S_SO)}, {s(S_T0)}')
    V_TR = 8
    dense_tr_addr(k, V_TR, S_LDS)
    ld = Loader(k, 9, S_LDS, S_OFF)
    WK = lambda odd, kb: ('a', odd * 64 + kb * 4)
    WV = lambda odd, kb: ('a', 128 + odd * 64 + kb * 4)
    WQ = lambda odd, kb: ('v', 128 + odd * 64 + kb * 4)
    pieces = []
    for srd_, fn in ((S_W0, WK), (S_W1, WV), (S_W2, WQ)):
        for q in range(4):
            pieces.append(dict(srd=srd_, soff=S_SO, ld=8192, row0=q * 128,
                               consume=dense_consume(k, V_TR, (lambda fn, q: lambda odd, kb: fn(odd, q * 4 + kb))(fn, q))))
    ld.run(pieces)
    V_PB, V_PS, V_T0, V_TS, VT = 8, 9, 10, 11, 12
    k(f'v_and_b32 v3, 31, {v(V_LANE)}')
    k('v_lshlrev_b32 v3, 2, v3')
    k(f'v_mov_b32 v4, {F_XN}')
    k(f'v_mov_b32 v5, {F_XN + 2 * 4096}')
    k(f'v_cndmask_b32 v4, v4, v5, {s(S_LO32, 2)}')
    k(f'v_add_u32 {v(V_PB)}, v3, v4')
    k(f'v_mov_b32 {v(V_PS)}, 128')
    k(f'v_mov_b32 {v(V_T0)}, 1')
    k(f'v_mov_b32 {v(V_TS)}, 0')
    k(f's_mov_b32 {s(S_B1)}, {s(S_RP)}')
    k(f's_mov_b32 {s(S_B2)}, {s(S_RP)}')
    if not (ENABLE['ao'] and ENABLE['ffn']):
        k(f's_mov_b32 {s(S_B2)}, 64')
    init_wait(k, VT, VT + 1)
    k('s_barrier')
    LW = 128 * KB
    X = [16, 24, 32]
    ACC = 48
    OUT = 96
    k.label('L_QKV_LOOP')
    pick(k, S_B1, S_B2, 2, V_PB, V_PS, V_T0, V_TS, VT, S_L, S_B, LW, 'L_END', 3)
    k(f's_lshl_b32 {s(S_SRC)}, {s(S_L)}, 22')
    k(f's_lshl_b32 {s(S_T0)}, {s(S_B)}, 16')
    k(f's_add_u32 {s(S_SRC)}, {s(S_SRC)}, {s(S_T0)}')
    k(f's_add_u32 {s(S_SRC)}, {s(S_SRC)}, {XN}')
    dma_xn_block(k, S_SRC, 0, S_T0)
    k(f's_lshl_b32 {s(S_KO)}, {s(S_L)}, 24')
    k(f's_lshl_b32 {s(S_T0)}, {s(S_B)}, 19')
    k(f's_add_u32 {s(S_KO)}, {s(S_KO)}, {s(S_T0)}')
    k(f's_lshl_b32 {s(S_T0)}, {s(S_H)}, 13')
    k(f's_add_u32 {s(S_KO)}, {s(S_KO)}, {s(S_T0)}')
    k(f's_lshl_b32 {s(S_T0)}, {s(S_WAVE)}, 11')
    k(f's_add_u32 {s(S_VO)}, {s(S_KO)}, {s(S_T0)}')
    k(f's_add_u32 {s(S_VO)}, {s(S_VO)}, {VBUF}')
    k(f's_lshl_b32 {s(S_T0)}, {s(S_WAVE)}, 10')
    k(f's_add_u32 {s(S_KO)}, {s(S_KO)}, {s(S_T0)}')
    k(f's_add_u32 {s(S_QO)}, {s(S_KO)}, {QB}')
    k(f's_add_u32 {s(S_KO)}, {s(S_KO)}, {KBUF}')
    k(f's_lshl_b32 {s(S_FO)}, {s(S_L)}, 14')
    k(f's_lshl_b32 {s(S_T0)}, {s(S_B)}, 9')
    k(f's_add_u32 {s(S_FO)}, {s(S_FO)}, {s(S_T0)}')
    k(f's_lshl_b32 {s(S_T0)}, {s(S_H)}, 4')
    k(f's_add_u32 {s(S_FO)}, {s(S_FO)}, {s(S_T0)}')
    k(f's_lshl_b32 {s(S_T0)}, {s(S_WAVE)}, 2')
    k(f's_add_u32 {s(S_FO)}, {s(S_FO)}, {s(S_T0)}')
    k('s_waitcnt vmcnt(0)')
    k('s_barrier')

    def rd(setidx, seg, kb):
        for t in range(2):
            k(f'ds_read_b128 {v(X[setidx] + 4 * t, 4)}, {v(V_L16)} offset:{((2 * seg + t) * 16 + kb) * 1024}')

    def C(acc, first):
        return '0' if first else v(acc, 4)

    for seg in range(2):
        rd(0, seg, 0)
        rd(1, seg, 1)
        for kb in range(16):
            if kb + 2 < 16:
                rd((kb + 2) % 3, seg, kb + 2)
                k('s_waitcnt lgkmcnt(4)')
            elif kb + 1 < 16:
                k('s_waitcnt lgkmcnt(2)')
            else:
                k('s_waitcnt lgkmcnt(0)')
            xs = X[kb % 3]
            for t in range(2):
                for odd in range(2):
                    acc = ACC + (t * 2 + odd) * 4
                    k(f'v_mfma_f32_16x16x32_bf16 {v(acc, 4)}, {R(*WK(odd, kb), 4)}, {v(xs + 4 * t, 4)}, {C(acc, kb == 0)}')
            for t in range(2):
                for odd in range(2):
                    acc = ACC + 16 + (t * 2 + odd) * 4
                    k(f'v_mfma_f32_16x16x32_bf16 {v(acc, 4)}, {v(xs + 4 * t, 4)}, {R(*WV(odd, kb), 4)}, {C(acc, kb == 0)}')
        for t in range(2):
            for r in range(4):
                k(f'v_cvt_pk_bf16_f32 {v(OUT + 4 * t + r)}, {v(ACC + t * 8 + r)}, {v(ACC + t * 8 + 4 + r)}')
            k(f's_add_u32 {s(S_T0)}, {s(S_KO)}, {seg * 256 * KB + t * 4096}')
            k(f'buffer_store_dwordx4 {v(OUT + 4 * t, 4)}, {v(V_L16)}, {s(S_WS, 4)}, {s(S_T0)} offen sc1')
        for odd in range(2):
            o = OUT + 8 + 4 * odd
            for t in range(2):
                acc = ACC + 16 + (t * 2 + odd) * 4
                k(f'v_cvt_pk_bf16_f32 {v(o + 2 * t)}, {v(acc)}, {v(acc + 1)}')
                k(f'v_cvt_pk_bf16_f32 {v(o + 2 * t + 1)}, {v(acc + 2)}, {v(acc + 3)}')
            k(f's_add_u32 {s(S_T0)}, {s(S_VO)}, {seg * 256 * KB + odd * 1024}')
            k(f'buffer_store_dwordx4 {v(o, 4)}, {v(V_L16)}, {s(S_WS, 4)}, {s(S_T0)} offen sc1')
    for seg in range(2):
        rd(0, seg, 0)
        rd(1, seg, 1)
        for kb in range(16):
            if kb + 2 < 16:
                rd((kb + 2) % 3, seg, kb + 2)
                k('s_waitcnt lgkmcnt(4)')
            elif kb + 1 < 16:
                k('s_waitcnt lgkmcnt(2)')
            else:
                k('s_waitcnt lgkmcnt(0)')
            xs = X[kb % 3]
            for t in range(2):
                for odd in range(2):
                    acc = ACC + (t * 2 + odd) * 4
                    k(f'v_mfma_f32_16x16x32_bf16 {v(acc, 4)}, {R(*WQ(odd, kb), 4)}, {v(xs + 4 * t, 4)}, {C(acc, kb == 0)}')
        if seg == 0:
            k('s_waitcnt vmcnt(0)')
            k(f's_add_u32 {s(S_T0)}, {s(S_FO)}, {F_KV}')
            set_flag(k, S_T0, VT)
        for t in range(2):
            for r in range(4):
                k(f'v_cvt_pk_bf16_f32 {v(OUT + 4 * t + r)}, {v(ACC + t * 8 + r)}, {v(ACC + t * 8 + 4 + r)}')
            k(f's_add_u32 {s(S_T0)}, {s(S_QO)}, {seg * 256 * KB + t * 4096}')
            k(f'buffer_store_dwordx4 {v(OUT + 4 * t, 4)}, {v(V_L16)}, {s(S_WS, 4)}, {s(S_T0)} offen sc1')
    k('s_waitcnt vmcnt(0)')
    k(f's_add_u32 {s(S_T0)}, {s(S_FO)}, {F_Q}')
    set_flag(k, S_T0, VT)
    k('s_branch L_QKV_LOOP')


def stub(k, label):
    k.label(label)
    init_arrive(k)
    k('s_branch L_END')


def build(path):
    k = Asm()
    prologue(k)
    role_red(k)
    role_qkv(k)
    import roles2
    roles2.role_chain(k) if ENABLE['chain'] else stub(k, 'L_CHAIN')
    roles2.role_ao(k) if ENABLE['ao'] else stub(k, 'L_AO')
    roles2.role_ffn(k) if ENABLE['ffn'] else stub(k, 'L_FFN')
    epilogue(k)
    body = k.finalize(verbose='-v' in sys.argv)
    ref = open('cdna_kernels/%s.s.ref' % NAME).read().splitlines()
    head = [l for l in ref if l.startswith(';') and '@launch' not in l and not l.startswith('    ')]
    head = head[:head.index([h for h in head if 'grid=ceil' in h][0]) + 1]
    txt = '\n'.join(head) + '\n'
    txt += f'; @launch grid=(256,1,1) block=(256,1,1) lds={LDS_BYTES}\n'
    txt += '.amdgcn_target "amdgcn-amd-amdhsa--gfx950"\n.text\n'
    txt += f'.globl {NAME}_kernel\n.p2align 8\n.type {NAME}_kernel,@function\n'
    txt += body
    txt += f'''.section .rodata,"a"
.p2align 6
.amdhsa_kernel {NAME}_kernel
  .amdhsa_next_free_vgpr 512
  .amdhsa_next_free_sgpr 102
  .amdhsa_accum_offset 256
  .amdhsa_group_segment_fixed_size 0
  .amdhsa_kernarg_size 112
  .amdhsa_user_sgpr_count 2
  .amdhsa_user_sgpr_kernarg_segment_ptr 1
  .amdhsa_system_sgpr_workgroup_id_x 1
.end_amdhsa_kernel
'''
    open(path, 'w').write(txt)
    print('wrote', path, len(txt), 'bytes; nops inserted', k.n_inserted)


if __name__ == '__main__':
    for arg in sys.argv[1:]:
        if arg.startswith('--no-'):
            ENABLE[arg[5:]] = False
    out = 'cdna_kernels/%s.s' % NAME
    for arg in sys.argv[1:]:
        if arg.startswith('--out='):
            out = arg[6:]
    sys.modules['gen'] = sys.modules['__main__']
    build(out)
```
